```python
import torch

def _softmax(x, axis=-1):
    return torch.softmax(x, dim=axis)
def _gelu(x):
    return torch.nn.functional.gelu(x, approximate="tanh")
def _silu(x):
    return torch.nn.functional.silu(x)
def _sigmoid(x):
    return torch.sigmoid(x)
def _layernorm(x, axis=-1, eps=1e-5):
    m = x.mean(dim=axis, keepdim=True)
    v = x.var(dim=axis, keepdim=True, unbiased=False)
    return (x - m) / torch.sqrt(v + eps)
def _scatter_add(tgt, idx, src, axis=0):
    return tgt.clone().index_add_(axis, idx, src)
def _segment_sum(src, seg, n):
    out = torch.zeros((n,) + src.shape[1:], dtype=src.dtype)
    return out.index_add_(0, seg, src)
def _pad(x, pw):
    flat = tuple(v for pair in reversed(pw) for v in pair)
    return torch.nn.functional.pad(x, flat)

kernel_name = 'recurrent_scan__spectral_fnet__glu_gated_reglu__prompt'

def setup_inputs():

    _w = (lambda a: (lambda t: t.to(torch.bfloat16) if t.is_floating_point() else t)(torch.as_tensor(a)))
    def _A_setup():
        B, S, D = 1, 2048, 512
        ns = torch.arange(S)[:, None] * torch.arange(S)[None, :]
        nd = torch.arange(D)[:, None] * torch.arange(D)[None, :]
        Ws_re = torch.cos(-2.0 * torch.pi * ns / S).to(float)
        Ws_im = torch.sin(-2.0 * torch.pi * ns / S).to(float)
        Wd_re = torch.cos(-2.0 * torch.pi * nd / D).to(float)
        Wd_im = torch.sin(-2.0 * torch.pi * nd / D).to(float)
        return {
            "x": _w((lambda *s: torch.randn(*s, dtype=torch.bfloat16) * 0.05)(B, S, D)),
            "dft_seq_re": _w(Ws_re),
            "dft_seq_im": _w(Ws_im),
            "dft_hid_re": _w(Wd_re),
            "dft_hid_im": _w(Wd_im),
        }
    _A_in = _A_setup()

    def _B_setup():
        B, S, D, F = 1, 2048, 512, 1792
        return {
            "x": _w((lambda *s: torch.randn(*s, dtype=torch.bfloat16) * 0.05)(B, S, D)),
            "W_gate": _w((lambda *s: torch.randn(*s, dtype=torch.bfloat16) * 0.05)(D, F) * (2.0 / D) ** 0.5),
            "W_up": _w((lambda *s: torch.randn(*s, dtype=torch.bfloat16) * 0.05)(D, F) * (2.0 / D) ** 0.5),
            "W_down": _w((lambda *s: torch.randn(*s, dtype=torch.bfloat16) * 0.05)(F, D) * (1.0 / F) ** 0.5),
        }
    _B_in = _B_setup()

    return {
        "A_x": _A_in["x"],
        "A_dft_seq_re": _A_in["dft_seq_re"],
        "A_dft_seq_im": _A_in["dft_seq_im"],
        "A_dft_hid_re": _A_in["dft_hid_re"],
        "A_dft_hid_im": _A_in["dft_hid_im"],
        "B_x": _B_in["x"],
        "B_W_gate": _B_in["W_gate"],
        "B_W_up": _B_in["W_up"],
        "B_W_down": _B_in["W_down"],
    }

def reference(A_x, A_dft_seq_re, A_dft_seq_im, A_dft_hid_re, A_dft_hid_im, B_x, B_W_gate, B_W_up, B_W_down):
    def _A_ref(x, dft_seq_re, dft_seq_im, dft_hid_re, dft_hid_im):
        a = torch.einsum("bsd,ed->bse", x, dft_hid_re)
        b = torch.einsum("bsd,ed->bse", x, dft_hid_im)
        y = torch.einsum("ts,bse->bte", dft_seq_re, a) - torch.einsum("ts,bse->bte", dft_seq_im, b)
        return y

    def _B_ref(x, W_gate, W_up, W_down):
        gate = torch.einsum("bsd,df->bsf", x, W_gate)
        up = torch.einsum("bsd,df->bsf", x, W_up)
        gate = gate * (lambda x, dt: x.to(dt))(gate > 0, gate.dtype)
        h = gate * up
        return torch.einsum("bsf,fd->bsd", h, W_down)

    x = A_x
    xn = _layernorm(x, axis=-1)
    s = _A_ref(xn, A_dft_seq_re, A_dft_seq_im, A_dft_hid_re, A_dft_hid_im)
    g = _silu(_B_ref(xn, B_W_gate, B_W_up, B_W_down))
    return x + s * g
```

```python
NAME = "recurrent_scan__spectral_fnet__glu_gated_reglu__prompt"
HF, WDT, CS, AB, A512, WS_SIZE = 0x0, 0x700000, 0x8C0000, 0xAC0000, 0xBC0000, 0xC00000

class Asm:
    def __init__(self):
        self.lines = []
    def __call__(self, s):
        for ln in s.strip("\n").split("\n"):
            self.lines.append("    " + ln.strip() if not ln.strip().endswith(":") else ln.strip())
    def text(self):
        return "\n".join(self.lines) + "\n"

def vr(a, n):
    return f"v[{a}:{a+n-1}]" if n > 1 else f"v{a}"
def ar(a, n):
    return f"a[{a}:{a+n-1}]" if n > 1 else f"a{a}"
def sr(a, n):
    return f"s[{a}:{a+n-1}]" if n > 1 else f"s{a}"

def srd(A, d, base, size):
    A(f"s_mov_b32 s{d}, s{base}")
    A(f"s_and_b32 s{d+1}, s{base+1}, 0xffff")
    A(f"s_mov_b32 s{d+2}, {hex(size)}")
    A(f"s_mov_b32 s{d+3}, 0x20000")

def descriptor(name, vgpr, accum, sgpr=102):
    return f""".section .rodata,"a"
.p2align 6
.amdhsa_kernel {name}
  .amdhsa_next_free_vgpr {vgpr}
  .amdhsa_next_free_sgpr {sgpr}
  .amdhsa_accum_offset {accum}
  .amdhsa_group_segment_fixed_size 0
  .amdhsa_kernarg_size 96
  .amdhsa_user_sgpr_count 2
  .amdhsa_user_sgpr_kernarg_segment_ptr 1
  .amdhsa_system_sgpr_workgroup_id_x 1
.end_amdhsa_kernel
"""

import os
INSTR = int(os.environ.get("INSTR", "0"))
def stamp(A, i):
    if INSTR: A(f"{'s_memrealtime' if INSTR == 3 else 's_memtime'} s[{72+2*i}:{73+2*i}]")
def stamp_dump(A, sel_wgs, nst, wavereg="s3", waves=(0,4)):
    if not INSTR: return
    import itertools
    lab = f"SD{id(A)%100000}_{len(A.lines)}"
    A("s_waitcnt lgkmcnt(0) vmcnt(0)")
    A("s_load_dwordx2 s[90:91], s[0:1], 80\ns_waitcnt lgkmcnt(0)")
    A("s_mov_b32 s92, s90\ns_and_b32 s93, s91, 0xffff\ns_mov_b32 s94, 256\ns_mov_b32 s95, 0x20000")
    A("s_mov_b32 s96, -1")
    k = 0
    for wg in sel_wgs:
        for w in waves:
            A(f"s_cmp_eq_u32 s2, {wg}\ns_cselect_b32 s97, 1, 0\ns_cmp_eq_u32 {wavereg}, {w}\ns_cselect_b32 s97, s97, 0\ns_cmp_eq_u32 s97, 1\ns_cselect_b32 s96, {k*nst*4}, s96")
            k += 1
    A(f"s_cmp_eq_u32 s96, -1\ns_cbranch_scc1 {lab}")
    for i in range(nst):
        A(f"s_sub_u32 s97, s{72+2*i}, {'0' if INSTR == 3 else 's72'}\nv_mov_b32 v2, s97\nv_mov_b32 v3, {4*i}\nbuffer_store_dword v2, v3, s[92:95], s96 offen\ns_nop 1")
    A(f"{lab}:")

class VM:
    def __init__(self, A): self.A = A; self.ops = []
    def issue(self, tag, text):
        self.A(text); self.ops.append(tag)
    def count(self, tag):
        idx = max(i for i, t in enumerate(self.ops) if t == tag)
        return min(63, len(self.ops) - 1 - idx)
    def wait(self, tag):
        self.A(f"s_waitcnt vmcnt({self.count(tag)})")
```

```python
from common import *

U0, RAW = 64, 192
ACC = 128
PRIO = int(os.environ.get('PRIO', '1'))
ALIGN = int(os.environ.get("ALIGN", "0"))
MAPA = """s_and_b32 s6, s4, 3
    s_lshl_b32 s6, s6, 2
    s_and_b32 s7, s5, 3
    s_add_u32 s6, s6, s7               ; rb
    s_lshr_b32 s7, s4, 2
    s_mul_i32 s7, s7, 7
    s_lshr_b32 s8, s5, 2
    s_add_u32 s7, s7, s8               ; cb"""
MAPB = """s_and_b32 s6, s4, 1
    s_lshl_b32 s6, s6, 3
    s_lshr_b32 s7, s4, 1
    s_lshl_b32 s7, s7, 1
    s_add_u32 s6, s6, s7
    s_and_b32 s7, s5, 1
    s_add_u32 s6, s6, s7               ; rb = 8(x&1) + 2(x>>1) + (q&1)
    s_lshr_b32 s7, s5, 1               ; cb"""
FR = 64
RINGA = 131072
RINGB = 69632
XTRA = 65536

def U(rho, i, d): return U0 + 32*rho + 8*i + 2*d
def RW(rho, i): return RAW + 16*rho + 4*i

def ln_stats(A, vm, rhos):
    S = [24, 26, 28, 30]
    for rho in rhos:
        vm.wait(f"x{rho}")
        k = 0
        for i in range(4):
            for d in range(4):
                r = RW(rho,i)+d
                sa, sq = S[rho] + 0, S[rho] + 1
                t = 32 + 2*(rho & 1)
                if k & 1: sa, sq = t, t+1
                c0 = "0" if k < 2 else None
                A(f"v_dot2_f32_bf16 v{sa}, v{r}, v38, {c0 or 'v%d' % sa}")
                A(f"v_dot2_f32_bf16 v{sq}, v{r}, v{r}, {c0 or 'v%d' % sq}")
                k += 1
        for i in range(4):
            for d in range(4):
                A(f"v_lshlrev_b32 v{U(rho,i,d)}, 16, v{RW(rho,i)+d}")
                A(f"v_and_b32 v{U(rho,i,d)+1}, s60, v{RW(rho,i)+d}")
        A(f"v_add_f32 v{S[rho]}, v{S[rho]}, v{32+2*(rho&1)}\nv_add_f32 v{S[rho]+1}, v{S[rho]+1}, v{33+2*(rho&1)}")
    for ror in (8, 4, 2, 1):
        for rho in rhos:
            for q in range(2):
                A(f"v_add_f32_dpp v{S[rho]+q}, v{S[rho]+q}, v{S[rho]+q} row_ror:{ror} row_mask:0xf bank_mask:0xf")
    for rho in rhos: A(f"v_mul_f32 v{49+2*rho}, 0xbb000000, v{S[rho]}")
    for rho in rhos: A(f"v_fma_f32 v{S[rho]+1}, v{S[rho]+1}, s61, v39")
    for rho in rhos: A(f"v_fma_f32 v{S[rho]+1}, -v{49+2*rho}, v{49+2*rho}, v{S[rho]+1}")
    for rho in rhos: A(f"v_max_f32 v{S[rho]+1}, v{S[rho]+1}, v39")
    A("s_nop 0")
    for rho in rhos: A(f"v_rsq_f32 v{40+2*rho}, v{S[rho]+1}")
    A("s_nop 0")
    for rho in rhos: A(f"v_mul_f32 v{48+2*rho}, v{49+2*rho}, v{40+2*rho}")

def side_job(A, vm, g1):
    L = []
    A(f"""s_lshr_b32 s4, s2, 2
    s_and_b32 s4, s4, 31               ; tb
    s_lshr_b32 s5, s4, 4               ; p
    s_and_b32 s8, s4, 15               ; ib
    s_and_b32 s9, s2, 3
    s_lshl_b32 s9, s9, 3
    s_add_u32 s9, s9, s70              ; step (z=0)
    s_lshl_b32 s8, s8, 6
    s_add_u32 s8, s8, s5               ; 64ib+p
    v_lshlrev_b32 v8, 1, v4
    v_add_u32 v8, s8, v8               ; t
    v_lshlrev_b32 v8, 12, v8           ; t*4096
    v_add_u32 v9, 1024, v8             ; Ws[t][512]
    s_lshl_b32 s10, s9, 5
    v_lshlrev_b32 v10, 3, v5
    v_add3_u32 v8, v8, v10, s10""")
    for z in range(2):
        L.append(f"buffer_load_dwordx2 v[{64+4*z}:{65+4*z}], v8, s[52:55], 0 offen offset:{128*z}")
        L.append(f"buffer_load_dwordx2 v[{66+4*z}:{67+4*z}], v8, s[52:55], 0 offen offset:{128*z+16}")
    L.append("buffer_load_ushort v72, v9, s[52:55], 0 offen")
    A(f"""s_lshr_b32 s10, s2, 7
    s_and_b32 s10, s10, s5
    s_cmp_eq_u32 s9, 0
    s_cselect_b32 s10, s10, 0
    s_mul_i32 s10, s10, 0xffff
    v_mov_b32 v73, s10
    v_mov_b32 v10, 0
    v_cmp_eq_u32 vcc, 0, v5
    s_nop 1
    v_cndmask_b32 v73, v10, v73, vcc
    s_lshl_b32 s10, s2, 13
    s_lshl_b32 s11, s70, 10
    s_add_u32 s10, s10, s11
    s_add_u32 s10, s10, {CS}
    v_lshlrev_b32 v10, 4, v1
    v_add_u32 v61, s10, v10""")
    if g1:
        A(f"""s_lshr_b32 s8, s6, 1              ; j
        s_lshl_b32 s8, s8, 5
        v_add_u32 v11, s8, v4               ; e
        v_mov_b32 v12, 256
        v_cmp_eq_u32 vcc, 0, v11
        s_nop 1
        v_cndmask_b32 v12, v11, v12, vcc
        v_sub_u32 v11, 512, v11
        v_and_b32 v11, 511, v11
        s_and_b32 s8, s6, 1
        s_cmp_eq_u32 s8, 0
        s_cselect_b64 s[64:65], -1, 0
        s_nop 0
        v_cndmask_b32 v11, v11, v12, s[64:65]
        v_lshlrev_b32 v11, 1, v11
        s_lshl_b32 s8, s7, 3
        s_add_u32 s8, s8, s70               ; step (z=0)
        s_lshl_b32 s9, s8, 14
        v_lshlrev_b32 v12, 12, v5
        v_add3_u32 v11, v11, v12, s9
        s_mul_i32 s9, s6, 112
        s_add_u32 s9, s9, s8
        s_lshl_b32 s9, s9, 10
        s_add_u32 s9, s9, {WDT}
        v_add_u32 v62, s9, v10
        s_mov_b32 s64, 8192
        s_mov_b32 s65, 65536
        s_mov_b32 s66, 73728""")
        for z in range(2):
            for e in range(8):
                so = [["0","s64"],["s65","s66"]][z][e >> 2]
                L.append(f"buffer_load_ushort v{80+8*z+e}, v11, s[56:59], {so} offen offset:{(e&3)*1024}")
    return L

def side_store(A, vm, g1):
    vm.wait("side")
    A("v_bfi_b32 v64, v73, v72, v64")
    if g1:
        for z in range(2):
            for q in range(4):
                A(f"v_lshl_or_b32 v{96+4*z+q}, v{81+8*z+2*q}, 16, v{80+8*z+2*q}")
    for z in range(2):
        vm.issue("sst", f"buffer_store_dwordx4 v[{64+4*z}:{67+4*z}], v61, s[40:43], 0 offen offset:0" if z == 0 else f"buffer_store_dwordx4 v[68:71], v63, s[40:43], 0 offen")
        if z == 0: A("v_add_u32 v63, 4096, v61")
    if g1:
        vm.issue("sst", "buffer_store_dwordx4 v[96:99], v62, s[40:43], 0 offen")
        A("v_add_u32 v63, 4096, v62")
        vm.issue("sst", "buffer_store_dwordx4 v[100:103], v63, s[40:43], 0 offen")

def consumer(A, steps, reads, mfmas, barrier_after):
    for ins in reads(0): A(ins)
    A("s_waitcnt lgkmcnt(0)")
    if barrier_after(-1): A("s_barrier")
    for st in range(steps):
        rd = reads(st+1) if st+1 < steps else []
        mm = mfmas(st)
        k = 0
        per = -(-len(rd)//len(mm)) if rd else 0
        for j, m in enumerate(mm):
            A(m)
            for _ in range(per):
                if k < len(rd) and j < len(mm)-1 or (k < len(rd) and j == len(mm)-1):
                    A(rd[k]); k += 1
        while k < len(rd):
            A(rd[k]); k += 1
        if rd: A("s_waitcnt lgkmcnt(0)")
        if barrier_after(st): A("s_barrier")

def side_prefetch(A, vm, g1, lab):
    A(f"""s_cmp_eq_u32 s3, 4
    s_cbranch_scc0 {lab}_A
    s_lshr_b32 s8, s2, 2
    s_and_b32 s8, s8, 31
    s_lshr_b32 s9, s8, 4
    s_and_b32 s8, s8, 15
    s_lshl_b32 s8, s8, 6
    s_add_u32 s8, s8, s9
    v_lshlrev_b32 v6, 1, v4
    v_add_u32 v6, s8, v6
    v_lshlrev_b32 v6, 12, v6
    s_and_b32 s9, s2, 3
    s_lshl_b32 s9, s9, 8
    v_lshlrev_b32 v7, 7, v5
    v_add3_u32 v6, v6, v7, s9
    buffer_load_dword v47, v6, s[52:55], 0 offen
    {lab}_A:""")
    if g1:
        A(f"""s_cmp_lt_u32 s3, 4
        s_cbranch_scc0 {lab}_B
        s_lshr_b32 s8, s6, 1
        s_lshl_b32 s8, s8, 6               ; 32j*2 bytes
        s_sub_u32 s9, 960, s8
        s_and_b32 s10, s6, 1
        s_cmp_eq_u32 s10, 0
        s_cselect_b32 s8, s8, s9
        s_lshr_b32 s9, s3, 1
        s_lshl_b32 s9, s9, 6
        s_add_u32 s8, s8, s9
        s_lshl_b32 s9, s7, 7
        s_and_b32 s10, s3, 1
        s_lshl_b32 s10, s10, 6
        s_add_u32 s9, s9, s10
        v_add_u32 v6, s9, v1
        v_lshlrev_b32 v6, 10, v6
        v_add_u32 v6, s8, v6
        buffer_load_dword v47, v6, s[56:59], 0 offen
        {lab}_B:""")
    vm.ops.append("pf")

def gen_k1(name):
    import copy
    A = Asm()
    A(f".p2align 8\n.globl {name}\n.type {name},@function\n{name}:")
    A("s_cmp_ge_u32 s2, 256\ns_cbranch_scc1 K1_END")
    stamp(A, 0)
    for i in range(1,8): stamp(A, i)
    A("s_load_dwordx2 s[16:17], s[0:1], 0\ns_load_dwordx8 s[20:27], s[0:1], 16\ns_load_dwordx8 s[28:35], s[0:1], 48\ns_load_dwordx2 s[18:19], s[0:1], 8\ns_load_dwordx2 s[66:67], s[0:1], 88")
    A("""v_and_b32 v1, 63, v0              ; lane
    v_lshrrev_b32 v2, 6, v0
    s_nop 0
    v_readfirstlane_b32 s3, v2         ; wave 0..7
    v_lshrrev_b32 v2, 4, v1            ; grp
    v_and_b32 v3, 15, v1               ; sub
    v_and_b32 v4, 31, v1               ; n / m
    v_lshrrev_b32 v5, 5, v1            ; h
    s_and_b32 s70, s3, 3               ; lw
    s_mov_b32 s60, 0xffff0000
    s_mov_b32 s61, 0x3b000000          ; 1/512
    v_mov_b32 v39, 0x3727c5ac          ; eps
    v_mov_b32 v38, 0x3f803f80          ; bf16 (1,1)
    s_cmp_ge_u32 s2, 224
    s_cbranch_scc1 K1_STAGE1""")
    def tail_srds():
        srd(A, 40, 66, WS_SIZE)
        srd(A, 56, 32, 0x1C0000)
        A("s_cmp_lt_u32 s2, 128\ns_cselect_b32 s52, s18, s20\ns_cselect_b32 s53, s19, s21\ns_and_b32 s53, s53, 0xffff\ns_mov_b32 s54, 0x800000\ns_mov_b32 s55, 0x20000")
    vm = VM(A)
    A("""s_and_b32 s4, s2, 7               ; xcd
    s_lshr_b32 s5, s2, 3               ; q 0..27
""" + (MAPA if not ALIGN else MAPB) + """
    s_lshr_b32 s8, s3, 2
    s_lshl_b32 s9, s6, 1
    s_add_u32 s8, s8, s9               ; tb
    s_lshr_b32 s9, s8, 4               ; p
    s_and_b32 s8, s8, 15               ; ib
    s_lshl_b32 s8, s8, 6
    s_add_u32 s8, s8, s9               ; 64ib+p
    s_and_b32 s9, s3, 1
    s_lshl_b32 s9, s9, 5
    s_add_u32 s8, s8, s9               ; + 2*16*(w&1)
    s_lshr_b32 s9, s3, 1
    s_and_b32 s9, s9, 1                ; half
    s_cmp_eq_u32 s9, 0
    s_cselect_b64 s[64:65], -1, 0
    v_lshlrev_b32 v6, 1, v2
    v_add_u32 v6, s8, v6
    v_mov_b32 v17, 1024""")
    for rho in range(4):
        A(f"""v_add_u32 v7, {8*rho}, v6          ; t
        v_sub_u32 v16, 2048, v7
        v_cmp_eq_u32 vcc, 0, v7
        s_nop 1
        v_cndmask_b32 v16, v16, v17, vcc
        v_cndmask_b32 v7, v16, v7, s[64:65]
        v_lshlrev_b32 v7, 10, v7
        v_lshl_add_u32 v{34+rho}, v3, 4, v7""")
    A("s_waitcnt lgkmcnt(0)")
    srd(A, 36, 16, 0x200000)
    for rho in range(4):
        for i in range(4):
            vm.issue(f"x{rho}", f"buffer_load_dwordx4 {vr(RW(rho,i),4)}, v{34+rho}, s[36:39], 0 offen offset:{i*256}")
    srd(A, 44, 28, 0x1C0000)
    srd(A, 48, 30, 0x1C0000)
    def g1_pro():
        A(f"""s_and_b32 s8, s3, 1
    s_cmp_eq_u32 s8, 0
    s_cselect_b32 s92, s44, s48
    s_cselect_b32 s93, s45, s49
    s_mov_b32 s94, 0x1C0000
    s_mov_b32 s95, 0x20000
    v_mul_u32_u24 v6, 3584, v2
    v_lshlrev_b32 v7, 2, v2
    v_xor_b32 v7, v7, v3
    v_lshlrev_b32 v7, 4, v7
    s_lshl_b32 s9, s7, 8
    v_add3_u32 v20, v6, v7, s9
    s_lshr_b32 s9, s3, 1
    s_mul_i32 s63, s9, 57344
    s_lshl_b32 s62, s9, 13
    s_lshl_b32 s8, s8, 12
    s_add_u32 s62, s62, s8
    s_add_u32 s62, s62, {RINGA}""")
        for a4 in range(4):
            A(f"s_add_u32 m0, s62, {a4*1024}\ns_add_u32 s8, s63, {a4*4*3584}")
            vm.issue("dma0", "buffer_load_dwordx4 v20, s[92:95], s8 offen lds")
        A("""s_and_b32 s8, s6, 3
    s_lshl_b32 s8, s8, 2
    s_lshr_b32 s9, s3, 1
    s_add_u32 s8, s8, s9
    s_lshl_b32 s8, s8, 5
    v_lshrrev_b32 v6, 1, v1
    v_add_u32 v6, s8, v6
    v_mul_u32_u24 v6, 3584, v6
    v_and_b32 v7, 1, v1
    v_lshlrev_b32 v7, 7, v7
    s_lshl_b32 s9, s7, 8
    v_add3_u32 v6, v6, v7, s9""")
        vm.issue("pf", "buffer_load_dword v47, v6, s[92:95], 0 offen")
        A(f"""s_mul_i32 s8, s70, {4*3584}
    v_add_u32 v20, s8, v20
    s_lshl_b32 s62, s70, 10
    s_add_u32 s62, s62, {RINGA}
    s_mov_b32 s63, {4*57344}""")
    tail_srds()
    A("""s_lshr_b32 s8, s3, 1
    s_lshl_b32 s8, s8, 15
    s_and_b32 s9, s3, 1
    s_lshl_b32 s9, s9, 8
    s_add_u32 s8, s8, s9
    v_lshrrev_b32 v6, 1, v3
    v_lshlrev_b32 v6, 10, v6
    v_and_b32 v7, 1, v3
    v_lshlrev_b32 v7, 9, v7
    v_add3_u32 v6, v6, v7, s8
    v_and_b32 v7, 7, v3
    v_xor_b32 v16, v2, v7
    v_lshl_add_u32 v16, v16, 4, v6
    v_add_u32 v17, 4, v2
    v_xor_b32 v17, v17, v7
    v_lshl_add_u32 v17, v17, 4, v6""")
    stamp(A, 1)
    if PRIO: A("s_cmp_lt_u32 s3, 4\ns_cbranch_scc1 G1_NP\ns_setprio 2\nG1_NP:")
    for pair in ((0,1),(2,3)):
        ln_stats(A, vm, pair)
        for rho in pair:
            for i in range(4):
                for d in range(4):
                    u = U(rho,i,d)
                    A(f"v_pk_fma_f32 {vr(u,2)}, {vr(u,2)}, {vr(40+2*rho,2)}, {vr(48+2*rho,2)} op_sel_hi:[1,0,0]")
                o = RW(rho,i)
                for d in range(4):
                    u = U(rho,i,d)
                    A(f"v_cvt_pk_bf16_f32 v{o+d}, v{u}, v{u+1}")
                A(f"ds_write_b128 v{16+(rho&1)}, {vr(o,4)} offset:{(rho>>1)*128 + i*8192}")
        stamp(A, 2 if pair[0] == 0 else 3)
        if pair[0] == 0: g1_pro()
    vm.wait("dma0")
    A("s_setprio 0")
    A("s_cmp_lt_u32 s3, 4\ns_cbranch_scc1 G1_CONS")
    def g1_dma(n):
        A(f"s_add_u32 m0, s62, {(n%4)*8192}\ns_nop 0")
        vm.issue(f"st{n}", "buffer_load_dwordx4 v20, s[44:47], s63 offen lds")
        A(f"s_add_u32 m0, s62, {(n%4)*8192+4096}\ns_nop 0")
        vm.issue(f"st{n}", "buffer_load_dwordx4 v20, s[48:51], s63 offen lds")
        A("s_add_u32 s63, s63, 57344")
    A("s_waitcnt lgkmcnt(0)")
    for n in range(32):
        if n >= 4: vm.wait(f"st{n}")
        A("s_barrier")
        if n >= 1 and n+3 < 32: g1_dma(n+3)
        if n == 20: SL = side_job(A, vm, True)
        if n >= 28:
            for _ in range(5 if n < 31 else 99):
                if SL: vm.issue("side", SL.pop(0))
        if n == 31: side_store(A, vm, True)
    A("s_branch K1_FIN")
    A("G1_CONS:")
    A(f"""s_lshr_b32 s8, s3, 1              ; wm
    s_and_b32 s9, s3, 1                ; wn
    v_lshrrev_b32 v8, 2, v3            ; r4
    v_and_b32 v9, 3, v3                ; col4
    v_and_b32 v10, 1, v2               ; q&1
    v_lshlrev_b32 v10, 1, v10
    v_lshrrev_b32 v11, 1, v9
    v_add_u32 v10, v10, v11            ; low2
    v_and_b32 v11, 1, v9
    v_lshlrev_b32 v11, 3, v11
    v_lshlrev_b32 v12, 3, v5
    v_add_u32 v12, v12, v8             ; k = 8h + r4
    v_lshlrev_b32 v12, 8, v12
    v_add_u32 v12, {RINGA}, v12
    v_add_u32 v12, v12, v11
    s_lshl_b32 s10, s8, 1
    v_xor_b32 v13, s10, v8
    v_lshl_add_u32 v13, v13, 2, v10
    v_lshl_add_u32 v6, v13, 4, v12
    s_add_u32 s10, s10, 1
    v_xor_b32 v13, s10, v8
    v_lshl_add_u32 v13, v13, 2, v10
    v_lshl_add_u32 v7, v13, 4, v12
    s_lshl_b32 s10, s9, 16
    v_lshlrev_b32 v12, 9, v5
    v_add_u32 v12, s10, v12""")
    for z in range(4):
        A(f"v_add_u32 v13, {2*z}, v5\nv_xor_b32 v13, v13, v4\nv_lshl_add_u32 v{16+z}, v13, 4, v12")
    def rd(st):
        b = FR + 24*(st & 1)
        L = []
        so = (st % 4)*8192
        for nt in range(2):
            L.append(f"ds_read_b128 {vr(b+16+4*nt,4)}, v{16+(st&3)} offset:{st*1024+nt*32768}")
        for mt in range(2):
            for mat in range(2):
                r = b + 8*mt + 4*mat
                L.append(f"ds_read_b64_tr_b16 {vr(r,2)}, v{6+mt} offset:{so+mat*4096}")
                L.append(f"ds_read_b64_tr_b16 {vr(r+2,2)}, v{6+mt} offset:{so+mat*4096+1024}")
        return L
    def mm(st):
        b = FR + 24*(st & 1)
        L = []
        for mt in range(2):
            for mat in range(2):
                for nt in range(2):
                    a = ACC + 16*(4*mt + 2*nt + mat)
                    c = "0" if st == 0 else vr(a,16)
                    L.append(f"v_mfma_f32_32x32x16_bf16 {vr(a,16)}, {vr(b+8*mt+4*mat,4)}, {vr(b+16+4*nt,4)}, {c}")
        return L
    A("s_waitcnt lgkmcnt(0)")
    stamp(A, 4)
    A("s_barrier\ns_setprio 1")
    stamp(A, 5)
    consumer(A, 32, rd, mm, lambda st: st <= 29)
    stamp(A, 6)
    A("s_setprio 0\ns_nop 7\ns_nop 7")
    A(f"""s_lshl_b32 s10, s6, 2
    s_lshl_b32 s11, s9, 1
    s_add_u32 s10, s10, s11
    s_mul_i32 s10, s10, 112
    s_lshl_b32 s11, s7, 3
    s_add_u32 s10, s10, s11
    s_lshl_b32 s11, s8, 2
    s_add_u32 s10, s10, s11
    s_lshl_b32 s10, s10, 10
    s_add_u32 s10, s10, {HF}
    s_add_u32 s11, s10, {112*1024}
    v_lshlrev_b32 v8, 4, v1""")
    for nt in range(2):
        for mt in range(2):
            g = ACC + 16*(4*mt+2*nt); u = g + 16
            for r in range(16): A(f"v_max_f32 v{g+r}, 0, v{g+r}")
            for r in range(0,16,2): A(f"v_pk_mul_f32 {vr(g+r,2)}, {vr(g+r,2)}, {vr(u+r,2)}")
            for r in range(8): A(f"v_cvt_pk_bf16_f32 v{u+r}, v{g+2*r}, v{g+2*r+1}")
            for uu in range(2):
                A(f"buffer_store_dwordx4 {vr(u+4*uu,4)}, v8, s[40:43], s{10+nt} offen offset:{mt*2048+uu*1024}")
    A("s_branch K1_FIN")
    A("K1_STAGE1:")
    vm = VM(A)
    A("""s_sub_u32 s4, s2, 224
    s_and_b32 s5, s4, 1
    s_lshr_b32 s6, s4, 1               ; sb
    s_lshl_b32 s8, s6, 5
    s_lshl_b32 s9, s3, 2
    s_add_u32 s8, s8, s9
    v_add_u32 v6, s8, v2               ; s'
    v_cmp_eq_u32 vcc, 0, v6
    v_sub_u32 v7, 2048, v6
    v_mov_b32 v8, 512
    v_cndmask_b32 v7, v7, v8, vcc      ; r2
    v_sub_u32 v8, 1024, v6             ; r3
    v_add_u32 v9, 1024, v6
    v_mov_b32 v10, 1536
    v_cndmask_b32 v9, v9, v10, vcc     ; r4
    v_lshlrev_b32 v10, 4, v3
    v_lshl_add_u32 v34, v6, 10, v10
    v_lshl_add_u32 v35, v7, 10, v10
    v_lshl_add_u32 v36, v8, 10, v10
    v_lshl_add_u32 v37, v9, 10, v10
    s_mov_b64 s[68:69], vcc            ; s'==0 lanes
    s_waitcnt lgkmcnt(0)""")
    srd(A, 36, 16, 0x200000)
    for rho in range(4):
        for i in range(4):
            vm.issue(f"x{rho}", f"buffer_load_dwordx4 {vr(RW(rho,i),4)}, v{34+rho}, s[36:39], 0 offen offset:{i*256}")
    def s1_pro():
        A(f"""s_cmp_eq_u32 s5, 0
    s_cselect_b32 s44, s22, s24
    s_cselect_b32 s45, s23, s25
    s_cselect_b64 s[64:65], -1, 0      ; cos
    s_and_b32 s45, s45, 0xffff
    s_mov_b32 s46, 0x80000
    s_mov_b32 s47, 0x20000
    v_lshrrev_b32 v6, 2, v1
    v_and_b32 v7, 3, v1
    v_xor_b32 v7, v7, v2
    v_lshlrev_b32 v7, 4, v7            ; c*16
    v_lshl_add_u32 v21, v6, 10, v7
    v_mov_b32 v8, 256
    v_cmp_eq_u32 vcc, 0, v6
    s_and_b64 vcc, vcc, s[64:65]
    s_nop 1
    v_cndmask_b32 v8, v6, v8, vcc
    v_lshl_add_u32 v20, v8, 10, v7
    s_and_b32 s8, s3, 1
    s_cmp_eq_u32 s8, 0
    s_cselect_b64 s[64:65], -1, 0
    s_nop 0
    v_cndmask_b32 v22, v21, v20, s[64:65]
    s_lshr_b32 s9, s3, 1
    s_lshl_b32 s63, s9, 6
    s_lshl_b32 s10, s8, 17
    s_add_u32 s63, s63, s10
    s_lshl_b32 s62, s9, 14
    s_lshl_b32 s10, s8, 13
    s_add_u32 s62, s62, s10
    s_add_u32 s62, s62, {RINGB}""")
        for a8 in range(8):
            A(f"s_add_u32 m0, s62, {a8*1024}\ns_add_u32 s8, s63, {a8*16384}")
            vm.issue("dma0", f"buffer_load_dwordx4 v{22 if a8 == 0 else 21}, s[44:47], s8 offen lds")
        A("""s_lshr_b32 s8, s4, 3
    s_and_b32 s8, s8, 3
    s_lshl_b32 s8, s8, 3
    s_add_u32 s8, s8, s3
    s_lshl_b32 s8, s8, 3
    v_lshrrev_b32 v6, 3, v1
    v_add_u32 v6, s8, v6
    v_and_b32 v7, 7, v1
    v_lshlrev_b32 v7, 7, v7
    v_lshl_add_u32 v6, v6, 10, v7""")
        vm.issue("pf", "buffer_load_dword v47, v6, s[44:47], 0 offen")
        A(f"""s_cmp_eq_u32 s70, 0
    s_cselect_b64 s[64:65], -1, 0
    s_lshl_b32 s8, s70, 16
    v_add_u32 v21, s8, v21
    v_cndmask_b32 v20, v21, v20, s[64:65]
    v_add_u32 v22, {32*1024}, v21
    v_add_u32 v23, {48*1024}, v21
    v_add_u32 v21, {16*1024}, v21
    s_lshl_b32 s62, s70, 12
    s_add_u32 s62, s62, {RINGB}
    s_mov_b32 s63, {4*64}""")
    tail_srds()
    stamp(A, 1)
    ln_stats(A, vm, (0,1))
    s1_pro()
    stamp(A, 2)
    ln_stats(A, vm, (2,3))
    stamp(A, 3)
    A("""s_cmp_eq_u32 s5, 0
    s_cselect_b32 s8, 0x3f800000, 0xbf800000     ; sigma
    s_cselect_b32 s9, 0x3f800000, 0              ; w1,w3 at s'=0
    s_cselect_b32 s10, 0, 0x3f800000             ; w2 at s'=0
    s_cselect_b32 s11, 0, 0xbf800000             ; w4 at s'=0
    v_mov_b32 v6, 1.0
    v_mov_b32 v7, s9
    v_cndmask_b32 v6, v6, v7, s[68:69]
    v_mul_f32 v8, v6, v40
    v_mul_f32 v12, v6, v44
    v_mov_b32 v6, s8
    v_mov_b32 v7, s10
    v_cndmask_b32 v7, v6, v7, s[68:69]
    v_mul_f32 v10, v7, v42
    v_mov_b32 v7, s11
    v_cndmask_b32 v7, v6, v7, s[68:69]
    v_mul_f32 v14, v7, v46
    v_mul_f32 v56, v8, v49
    v_fma_f32 v56, v10, v51, v56       ; cu = -(m1 s1 + m2 s2)
    v_mul_f32 v58, v12, v53
    v_fma_f32 v58, v14, v55, v58       ; cv
    v_add_f32 v60, v50, v54            ; extra-row constant
    s_lshl_b32 s8, s3, 2
    v_add_u32 v6, s8, v2               ; m
    v_and_b32 v7, 7, v3
    v_xor_b32 v6, v6, v7
    v_lshlrev_b32 v6, 4, v6
    v_lshrrev_b32 v7, 1, v3
    v_lshl_add_u32 v6, v7, 10, v6
    v_and_b32 v7, 1, v3
    v_lshl_add_u32 v16, v7, 9, v6      ; LDS write addr
    v_lshlrev_b32 v17, 4, v3
    v_add_u32 v17, %d, v17             ; extra row addr""" % XTRA)
    for i in range(4):
        o = RW(0,i)
        for d in range(4):
            u2, u4 = U(1,i,d), U(3,i,d)
            A(f"v_pk_fma_f32 v[18:19], {vr(u2,2)}, v[42:43], v[60:61] op_sel_hi:[1,0,0]")
            A(f"v_pk_fma_f32 v[18:19], {vr(u4,2)}, v[46:47], v[18:19] op_sel_hi:[1,0,1]")
            A(f"v_cvt_pk_bf16_f32 v{o+d}, v18, v19")
        A("s_mov_b64 exec, s[90:91]") if False else None
    A("s_cmp_eq_u32 s3, 0\ns_cbranch_scc0 S1_NOX")
    A("s_mov_b64 s[90:91], exec\ns_mov_b32 exec_lo, 0xffff\ns_mov_b32 exec_hi, 0")
    for i in range(4):
        A(f"ds_write_b128 v17, {vr(RW(0,i),4)} offset:{i*256}")
    A("s_mov_b64 exec, s[90:91]\nS1_NOX:")
    for i in range(4):
        o1, o2 = RW(1,i), RW(2,i)
        for d in range(4):
            u1,u2,u3,u4 = (U(r,i,d) for r in range(4))
            A(f"v_pk_fma_f32 {vr(u1,2)}, {vr(u1,2)}, v[8:9], v[56:57] op_sel_hi:[1,0,0]")
            A(f"v_pk_fma_f32 {vr(u3,2)}, {vr(u3,2)}, v[12:13], v[58:59] op_sel_hi:[1,0,0]")
            A(f"v_pk_fma_f32 {vr(u1,2)}, {vr(u2,2)}, v[10:11], {vr(u1,2)} op_sel_hi:[1,0,1]")
            A(f"v_pk_fma_f32 {vr(u3,2)}, {vr(u4,2)}, v[14:15], {vr(u3,2)} op_sel_hi:[1,0,1]")
            A(f"v_pk_add_f32 {vr(u2,2)}, {vr(u1,2)}, {vr(u3,2)}")
            A(f"v_pk_add_f32 {vr(u4,2)}, {vr(u1,2)}, {vr(u3,2)} neg_lo:[0,1] neg_hi:[0,1]")
            A(f"v_cvt_pk_bf16_f32 v{o1+d}, v{u2}, v{u2+1}")
            A(f"v_cvt_pk_bf16_f32 v{o2+d}, v{u4}, v{u4+1}")
        A(f"ds_write_b128 v16, {vr(o1,4)} offset:{i*8192}")
        A(f"ds_write_b128 v16, {vr(o2,4)} offset:{i*8192+32768}")
    vm.wait("dma0")
    A("s_cmp_lt_u32 s3, 4\ns_cbranch_scc1 S1_CONS")
    def s1_dma(n):
        for a in range(4):
            A(f"s_add_u32 m0, s62, {(n%4)*16384+a*1024}\ns_nop 0")
            vm.issue(f"st{n}", f"buffer_load_dwordx4 v{20+a}, s[44:47], s63 offen lds")
        A("s_add_u32 s63, s63, 64")
    A("s_waitcnt lgkmcnt(0)")
    for n in range(16):
        if n >= 4: vm.wait(f"st{n}")
        A("s_barrier")
        if n >= 1 and n+3 < 16: s1_dma(n+3)
        if n == 8: SL = side_job(A, vm, False)
        if n == 13:
            while SL: vm.issue("side", SL.pop(0))
        if n == 15: side_store(A, vm, False)
    A("s_branch K1_FIN")
    A("S1_CONS:")
    A(f"""s_lshl_b32 s8, s3, 6
    v_add_u32 v8, s8, v4
    v_lshlrev_b32 v8, 6, v8
    v_add_u32 v8, {RINGB}, v8
    v_lshrrev_b32 v9, 2, v4
    v_and_b32 v9, 3, v9
    v_xor_b32 v9, v9, v5
    v_lshl_add_u32 v6, v9, 4, v8
    v_xor_b32 v9, 2, v9
    v_lshl_add_u32 v7, v9, 4, v8
    v_lshlrev_b32 v12, 9, v5
    v_lshlrev_b32 v20, 4, v5
    v_add_u32 v20, {XTRA}, v20""")
    for z in range(4):
        A(f"v_add_u32 v13, {2*z}, v5\nv_xor_b32 v13, v13, v4\nv_lshl_add_u32 v{16+z}, v13, 4, v12")
    def rd1(st):
        b = FR + 24*(st & 1)
        n, uu = st >> 1, st & 1
        L = [f"ds_read_b128 {vr(b,4)}, v{16+(st&3)} offset:{st*1024}",
             f"ds_read_b128 {vr(b+12,4)}, v{6+uu} offset:{(n%4)*16384}",
             f"ds_read_b128 {vr(b+4,4)}, v{16+(st&3)} offset:{st*1024+32768}",
             f"ds_read_b128 {vr(b+16,4)}, v{6+uu} offset:{(n%4)*16384+2048}",
             f"ds_read_b128 {vr(b+8,4)}, v20 offset:{st*32}"]
        return L
    def mm1(st):
        b = FR + 24*(st & 1)
        L = []
        for mt in range(3):
            for nt in range(2):
                a = ACC + 16*(2*mt+nt)
                c = "0" if st == 0 else vr(a,16)
                L.append(f"v_mfma_f32_32x32x16_bf16 {vr(a,16)}, {vr(b+4*mt,4)}, {vr(b+12+4*nt,4)}, {c}")
        return L
    A("s_waitcnt lgkmcnt(0)")
    stamp(A, 4)
    A("s_barrier")
    stamp(A, 5)
    consumer(A, 32, rd1, mm1, lambda st: st >= 0 and (st & 1) == 0 and st//2+1 <= 15)
    stamp(A, 6)
    A("s_nop 7\ns_nop 7")
    A(f"""s_lshl_b32 s8, s5, 1
    s_add_u32 s9, s8, s5
    s_sub_u32 s10, 1, s5
    s_add_u32 s10, s10, s8
    s_lshl_b32 s11, s3, 1              ; j0
    s_lshl_b32 s9, s9, 3
    s_add_u32 s9, s9, s11
    s_lshl_b32 s9, s9, 5
    s_lshl_b32 s10, s10, 3
    s_add_u32 s10, s10, s11
    s_lshl_b32 s10, s10, 5
    s_lshl_b32 s11, s6, 1
    s_add_u32 s9, s9, s11
    s_add_u32 s10, s10, s11
    s_lshl_b32 s9, s9, 10
    s_lshl_b32 s10, s10, 10
    s_add_u32 s9, s9, {AB}
    s_add_u32 s10, s10, {AB}
    s_add_u32 s12, s9, 32768
    s_add_u32 s13, s10, 32768
    v_lshlrev_b32 v8, 4, v1""")
    for mt in range(2):
        for nt in range(2):
            a = ACC + 16*(2*mt+nt)
            o = FR + 8*(2*mt+nt)
            for r in range(8): A(f"v_cvt_pk_bf16_f32 v{o+r}, v{a+2*r}, v{a+2*r+1}")
            so = [["s9","s12"],["s10","s13"]][mt][nt]
            for uu in range(2):
                A(f"buffer_store_dwordx4 {vr(o+4*uu,4)}, v8, s[40:43], {so} offen offset:{uu*1024}")
    A(f"""s_cmp_eq_u32 s4, 0
    s_cbranch_scc0 K1_FIN
    s_lshl_b32 s8, s3, 8
    s_add_u32 s8, s8, {A512}
    v_lshlrev_b32 v8, 2, v4
    s_mov_b64 s[68:69], exec
    s_mov_b32 exec_lo, -1
    s_mov_b32 exec_hi, 0
    buffer_store_dword v{ACC+64}, v8, s[40:43], s8 offen
    buffer_store_dword v{ACC+80}, v8, s[40:43], s8 offen offset:128
    s_mov_b64 exec, s[68:69]""")
    A("K1_FIN:")
    if INSTR:
        A("s_waitcnt vmcnt(0)")
        stamp(A, 7)
        stamp_dump(A, (0, 100, 224, 255), 8) if INSTR != 3 else stamp_dump(A, (0,1,31,100,200,223,224,255), 8, waves=(0,))
    A("K1_END:\ns_endpgm")
    return A.text()
```

```python
from common import *
import os

DEPTH = int(os.environ.get('DEPTH', '8'))
DD = 176
NSTEP = 36
RING0 = 40
XV = 20
def gen_k2(name):
    A = Asm()
    A(f".p2align 8\n.globl {name}\n.type {name},@function\n{name}:")
    A("s_cmp_ge_u32 s2, 256\ns_cbranch_scc1 K2_END")
    for i in range(8): stamp(A, i)
    A("s_load_dwordx2 s[16:17], s[0:1], 0\ns_load_dwordx2 s[18:19], s[0:1], 72\ns_load_dwordx2 s[20:21], s[0:1], 88")
    A("v_and_b32 v1, 63, v0\nv_lshrrev_b32 v2, 6, v0\ns_nop 0\nv_readfirstlane_b32 s3, v2")
    A("""s_and_b32 s4, s2, 7
    s_lshr_b32 s5, s2, 3
    s_and_b32 s6, s4, 1            ; p
    s_lshr_b32 s7, s4, 1
    s_lshl_b32 s7, s7, 2
    s_and_b32 s8, s5, 3
    s_add_u32 s7, s7, s8           ; ib
    s_lshr_b32 s8, s5, 2           ; j
    s_lshl_b32 s9, s6, 4
    s_add_u32 s9, s9, s7           ; tb
    s_lshr_b32 s10, s3, 1
    s_and_b32 s11, s3, 1           ; nt = w&1
    s_waitcnt lgkmcnt(0)""")
    srd(A, 24, 16, 0x200000)
    srd(A, 28, 18, 0x200000)
    srd(A, 32, 20, WS_SIZE)
    A(f"""s_mul_i32 s36, s9, {2*112*1024}
    s_mul_i32 s12, s3, {28*1024}
    s_add_u32 s36, s36, s12
    s_add_u32 s36, s36, {HF}
    s_add_u32 s37, s36, {112*1024}
    s_mul_i32 s38, s8, {2*112*1024}
    s_add_u32 s38, s38, s12
    s_add_u32 s38, s38, {WDT}
    s_add_u32 s39, s38, {112*1024}""")
    A(f"""s_lshl_b32 s56, s10, 5
    s_add_u32 s56, s56, s9
    s_lshl_b32 s56, s56, 15
    s_lshl_b32 s12, s11, 14
    s_add_u32 s56, s56, s12
    s_add_u32 s56, s56, {CS}
    s_lshl_b32 s57, s10, 1
    s_add_u32 s57, s57, s6
    s_lshl_b32 s57, s57, 3
    s_add_u32 s57, s57, s8
    s_lshl_b32 s57, s57, 15
    s_add_u32 s57, s57, s12
    s_add_u32 s57, s57, {AB}""")
    A("v_lshlrev_b32 v2, 4, v1          ; lane*16")
    def LATE():
        A("""v_and_b32 v3, 31, v1
    v_lshrrev_b32 v4, 5, v1
    s_lshl_b32 s12, s8, 5
    v_add_u32 v5, s12, v3              ; e = 32j+n
    v_mov_b32 v6, 256
    v_cmp_eq_u32 vcc, 0, v5
    s_nop 1
    v_cndmask_b32 v6, v5, v6, vcc
    v_sub_u32 v7, 512, v5
    v_and_b32 v7, 511, v7
    s_cmp_eq_u32 s11, 0
    s_cselect_b64 s[58:59], -1, 0
    s_nop 0
    v_cndmask_b32 v6, v7, v6, s[58:59]  ; col
    v_lshlrev_b32 v6, 1, v6
    v_mov_b32 v8, 1.0
    v_mov_b32 v9, 0
    s_andn2_b64 s[60:61], vcc, s[58:59]
    s_nop 1
    v_cndmask_b32 v8, v8, v9, s[60:61]
    s_lshl_b32 s12, s7, 6
    s_add_u32 s12, s12, s6
    v_lshlrev_b32 v9, 3, v4
    v_add_u32 v9, s12, v9
    v_sub_u32 v10, 1994, v9
    s_cmp_eq_u32 s10, 0
    s_cselect_b64 s[58:59], -1, 0
    s_nop 1
    v_cndmask_b32 v9, v10, v9, s[58:59]
    v_lshlrev_b32 v9, 10, v9
    v_add_u32 v9, v9, v6
    s_cmp_eq_u32 s9, 0
    s_cselect_b32 s12, s10, 0
    s_lshl_b32 s13, s12, 20
    v_mov_b32 v10, s13
    v_mov_b32 v11, 0
    v_cmp_eq_u32 vcc, 0, v4
    s_nop 1
    v_cndmask_b32 v10, v11, v10, vcc
    v_sub_u32 v10, v9, v10
    v_mov_b32 v12, s12
    v_cndmask_b32 v12, v11, v12, vcc
    """)
        for r in range(16):
            off = 16*(r>>2) + 2*(r&3)
            A(f"s_mov_b32 s12, {off*1024}\ns_mov_b32 s13, {(54-off)*1024}\ns_cmp_eq_u32 s10, 0\ns_cselect_b32 s{40+r}, s12, s13")

    vm = VM(A)
    def slot(st): return RING0 + 16*(st % DEPTH)
    def loads(st):
        b = slot(st); tg = f"s{st}"
        if st < 28:
            o = (st & 3)*1024
            for q, s in enumerate((36, 38, 37, 39)):
                r = (0, 8, 4, 12)[q]
                vm.issue(tg, f"buffer_load_dwordx4 {vr(b+r,4)}, v2, s[32:35], s{s} offen offset:{o}")
            if (st & 3) == 3:
                for s in (36, 37, 38, 39): A(f"s_add_u32 s{s}, s{s}, 4096")
        else:
            u = st - 28
            o = (u & 1)*2048
            vm.issue(tg, f"buffer_load_dwordx4 {vr(b,4)}, v2, s[32:35], s56 offen offset:{o}")
            vm.issue(tg, f"buffer_load_dwordx4 {vr(b+4,4)}, v2, s[32:35], s57 offen offset:{o}")
            vm.issue(tg, f"buffer_load_dwordx4 {vr(b+8,4)}, v2, s[32:35], s56 offen offset:{o+1024}")
            vm.issue(tg, f"buffer_load_dwordx4 {vr(b+12,4)}, v2, s[32:35], s57 offen offset:{o+1024}")
            if u & 1: A("s_add_u32 s56, s56, 4096\ns_add_u32 s57, s57, 4096")
    def mfmas(st):
        b = slot(st)
        if st < 28:
            for mt in range(2):
                for nt in range(2):
                    a = 16*(2*mt+nt)
                    c = "0" if st == 0 else ar(a,16)
                    A(f"v_mfma_f32_32x32x16_bf16 {ar(a,16)}, {vr(b+4*mt,4)}, {vr(b+8+4*nt,4)}, {c}")
        else:
            f = st == 28
            A(f"v_mfma_f32_32x32x16_bf16 a[64:79], {vr(b,4)}, {vr(b+4,4)}, {'0' if f else 'a[64:79]'}")
            A(f"v_mfma_f32_32x32x16_bf16 a[80:95], v[16:19], {vr(b+4,4)}, {'0' if f else 'a[80:95]'}")
            A(f"v_mfma_f32_32x32x16_bf16 a[64:79], {vr(b+8,4)}, {vr(b+12,4)}, a[64:79]")
            A(f"v_mfma_f32_32x32x16_bf16 a[80:95], v[16:19], {vr(b+12,4)}, a[80:95]")
    def late_setup():
        LATE()
        A(f"""s_lshl_b32 s12, s8, 7
        s_add_u32 s12, s12, {A512}
        v_lshlrev_b32 v11, 2, v3""")
        vm.issue("x", "buffer_load_dword v13, v11, s[32:35], s12 offen")
        for r in range(16):
            vm.issue("x", f"buffer_load_ushort v{XV+r}, v{10 if r == 0 else 9}, s[24:27], s{40+r} offen")
        A("""v_mov_b32 v14, 0xBF803F80
        v_mov_b32 v15, 0
        v_cmp_eq_u32 vcc, 0, v3
        s_nop 1
        v_cndmask_b32 v16, v15, v14, vcc
        v_cndmask_b32 v17, v15, v14, vcc
        v_cndmask_b32 v18, v15, v14, vcc
        v_cndmask_b32 v19, v15, v14, vcc""")
        A("s_lshl_b32 s12, s3, 14\nv_add_u32 v11, s12, v2          ; w*16K + lane*16")
        A("s_lshl_b32 s12, s3, 12\ns_add_u32 s13, s12, 65536\nv_add_u32 v14, s13, v2\nv_add_u32 v38, s12, v2")
        A("s_lshl_b32 s12, s3, 8\ns_add_u32 s12, s12, 81920\nv_lshlrev_b32 v15, 2, v1\nv_add_u32 v15, s12, v15")
    for st in range(DEPTH): loads(st)
    stamp(A, 1)
    DR = 232
    for st in range(NSTEP):
        if st == 1: stamp(A, 2)
        if st == 14: stamp(A, 3)
        if st == 28: stamp(A, 4)
        vm.wait(f"s{st}")
        mfmas(st)
        if st + DEPTH < NSTEP: loads(st+DEPTH)
        if st == 2: late_setup()
        if st == 28:
            A("s_nop 7\ns_nop 3")
            for qd in range(4):
                for g in range(4):
                    A(f"ds_write_b128 v11, {ar(16*qd+4*g,4)} offset:{(qd*4+g)*1024}")
        if st == 31:
            A("s_waitcnt lgkmcnt(0)\ns_barrier")
            for src in range(4):
                for g in range(4):
                    A(f"ds_read_b128 {vr(DD+16*src+4*g,4)}, v38 offset:{src*16384+g*1024}")
        if st == 33:
            A("s_waitcnt lgkmcnt(0)")
            D = DD
            for r in range(0,16,2):
                A(f"v_pk_add_f32 {vr(D+r,2)}, {vr(D+r,2)}, {vr(D+16+r,2)}\nv_pk_add_f32 {vr(D+32+r,2)}, {vr(D+32+r,2)}, {vr(D+48+r,2)}")
            for r in range(0,16,2):
                A(f"v_pk_add_f32 {vr(D+r,2)}, {vr(D+r,2)}, {vr(D+32+r,2)}")
            T = D+16
            for r in range(16): A(f"v_mul_f32 v{T+r}, 0xbfb8aa3b, v{D+r}")
            for r in range(16): A(f"v_exp_f32 v{T+r}, v{T+r}")
            for r in range(16): A(f"v_add_f32 v{T+r}, 1.0, v{T+r}")
        if st == 34:
            D = DD; T = D+16
            for r in range(16): A(f"v_rcp_f32 v{T+r}, v{T+r}")
            vm.wait("x")
            for r in range(16): A(f"v_mul_f32 v{D+r}, v{D+r}, v8\nv_lshlrev_b32 v{XV+r}, 16, v{XV+r}")
            for r in range(16): A(f"v_mul_f32 v{D+r}, v{D+r}, v{T+r}")
    stamp(A, 5)
    A("s_nop 7\ns_nop 7")
    for g in range(4):
        A(f"ds_write_b128 v14, {ar(64+4*g,4)} offset:{g*1024}")
    A("ds_write_b32 v15, a80")
    A("v_add_u32 v14, 65536, v2\nv_lshlrev_b32 v15, 2, v3\nv_add_u32 v15, 81920, v15")
    A("s_waitcnt lgkmcnt(0)\ns_barrier")
    R = RING0
    for src in range(4):
        for g in range(4):
            A(f"ds_read_b128 {vr(R+16*src+4*g,4)}, v14 offset:{src*4096+g*1024}")
    A(f"ds_read_b32 v36, v15\nds_read_b32 v37, v15 offset:256")
    A("""s_cmp_eq_u32 s10, s11
    s_cselect_b32 s12, 0xbf800000, 0x3f800000
    s_cmp_eq_u32 s6, 0
    s_cselect_b32 s13, 0x3f800000, 0
    v_mul_f32 v13, s13, v13
    s_waitcnt lgkmcnt(0)""")
    D, P = DD, R
    for r in range(0,16,2):
        A(f"v_pk_add_f32 {vr(P+r,2)}, {vr(P+r,2)}, {vr(P+16+r,2)}\nv_pk_add_f32 {vr(P+32+r,2)}, {vr(P+32+r,2)}, {vr(P+48+r,2)}")
    for r in range(16):
        op = "v_add_f32" if (r & 1) == 0 else "v_sub_f32"
        A(f"{op} v{P+r}, v{P+r}, v13")
    for r in range(16):
        A(f"v_fma_f32 v{P+r}, s12, v{P+32+r}, v{P+r}")
    A(f"""v_add_f32 v36, v36, v37
    v_add_f32 v36, v36, v13
    v_cmp_ne_u32 vcc, 0, v12
    s_nop 1
    v_cndmask_b32 v{P}, v{P}, v36, vcc""")
    stamp(A, 6)
    for r in range(16):
        A(f"v_fma_f32 v{D+r}, v{D+r}, v{P+r}, v{XV+r}")
    for r in range(16):
        A(f"v_cvt_pk_bf16_f32 v{D+r}, v{D+r}, v{D+r}")
    for r in range(16):
        A(f"buffer_store_short v{D+r}, v{10 if r == 0 else 9}, s[28:31], s{40+r} offen")
    if INSTR:
        A("s_waitcnt vmcnt(0)")
        if INSTR in (1,3): stamp(A, 7)
        stamp_dump(A, (0, 77, 130, 255), 8, waves=(0,3)) if INSTR != 3 else stamp_dump(A, (0,1,31,77,130,200,254,255), 8, waves=(0,))
    A("K2_END:\ns_endpgm")
    assert RING0 + 16*DEPTH <= DD
    return A.text(), 256
```

```python
import sys
sys.path.insert(0, "gen")
from common import *
import k1, k2
hdr = open(f"cdna_kernels/{NAME}.s.ref").read().split("; Override launch")[0]
K1 = NAME + "_kernel"; K2 = "fnet_glu_combine_kernel"
t2, nv2 = k2.gen_k2(K2)
s = hdr
s += f"; @launch kernel={K1} grid=(256,1,1) block=(512,1,1) lds=163840\n"
s += f"; @launch kernel={K2} grid=(256,1,1) block=(256,1,1) lds=83968\n"
s += '.amdgcn_target "amdgcn-amd-amdhsa--gfx950"\n.text\n'
s += k1.gen_k1(K1) + t2
s += descriptor(K1, 256, 256) + descriptor(K2, 256+96, 256)
out = sys.argv[1] if len(sys.argv) > 1 else f"cdna_kernels/{NAME}.s"
open(out, "w").write(s)
print("written", out, len(s))
```

```python
from common import *

U0, RAW = 64, 192
ACC = 128
PRIO = int(os.environ.get('PRIO', '1'))
ALIGN = int(os.environ.get("ALIGN", "0"))
MAPA = """s_and_b32 s6, s4, 3
    s_lshl_b32 s6, s6, 2
    s_and_b32 s7, s5, 3
    s_add_u32 s6, s6, s7               ; rb
    s_lshr_b32 s7, s4, 2
    s_mul_i32 s7, s7, 7
    s_lshr_b32 s8, s5, 2
    s_add_u32 s7, s7, s8               ; cb"""
MAPB = """s_and_b32 s6, s4, 1
    s_lshl_b32 s6, s6, 3
    s_lshr_b32 s7, s4, 1
    s_lshl_b32 s7, s7, 1
    s_add_u32 s6, s6, s7
    s_and_b32 s7, s5, 1
    s_add_u32 s6, s6, s7               ; rb = 8(x&1) + 2(x>>1) + (q&1)
    s_lshr_b32 s7, s5, 1               ; cb"""
FR = 64
RINGA = 131072
RINGB = 69632
XTRA = 65536

def U(rho, i, d): return U0 + 32*rho + 8*i + 2*d
def RW(rho, i): return RAW + 16*rho + 4*i

def ln_stats(A, vm, rhos):
    S = [24, 26, 28, 30]
    for rho in rhos:
        vm.wait(f"x{rho}")
        k = 0
        for i in range(4):
            for d in range(4):
                r = RW(rho,i)+d
                sa, sq = S[rho] + 0, S[rho] + 1
                t = 32 + 2*(rho & 1)
                if k & 1: sa, sq = t, t+1
                c0 = "0" if k < 2 else None
                A(f"v_dot2_f32_bf16 v{sa}, v{r}, v38, {c0 or 'v%d' % sa}")
                A(f"v_dot2_f32_bf16 v{sq}, v{r}, v{r}, {c0 or 'v%d' % sq}")
                k += 1
        for i in range(4):
            for d in range(4):
                A(f"v_lshlrev_b32 v{U(rho,i,d)}, 16, v{RW(rho,i)+d}")
                A(f"v_and_b32 v{U(rho,i,d)+1}, s60, v{RW(rho,i)+d}")
        A(f"v_add_f32 v{S[rho]}, v{S[rho]}, v{32+2*(rho&1)}\nv_add_f32 v{S[rho]+1}, v{S[rho]+1}, v{33+2*(rho&1)}")
    for ror in (8, 4, 2, 1):
        for rho in rhos:
            for q in range(2):
                A(f"v_add_f32_dpp v{S[rho]+q}, v{S[rho]+q}, v{S[rho]+q} row_ror:{ror} row_mask:0xf bank_mask:0xf")
    for rho in rhos: A(f"v_mul_f32 v{49+2*rho}, 0xbb000000, v{S[rho]}")
    for rho in rhos: A(f"v_fma_f32 v{S[rho]+1}, v{S[rho]+1}, s61, v39")
    for rho in rhos: A(f"v_fma_f32 v{S[rho]+1}, -v{49+2*rho}, v{49+2*rho}, v{S[rho]+1}")
    for rho in rhos: A(f"v_max_f32 v{S[rho]+1}, v{S[rho]+1}, v39")
    A("s_nop 0")
    for rho in rhos: A(f"v_rsq_f32 v{40+2*rho}, v{S[rho]+1}")
    A("s_nop 0")
    for rho in rhos: A(f"v_mul_f32 v{48+2*rho}, v{49+2*rho}, v{40+2*rho}")

USE_CS = int(os.environ.get('USE_CS', '0'))
def side_job(A, vm, g1):
    L = []
    if USE_CS:
        A(f"""s_lshr_b32 s4, s2, 2
        s_and_b32 s4, s4, 31               ; tb
        s_lshr_b32 s5, s4, 4               ; p
        s_and_b32 s8, s4, 15               ; ib
        s_and_b32 s9, s2, 3
        s_lshl_b32 s9, s9, 3
        s_add_u32 s9, s9, s70              ; step (z=0)
        s_lshl_b32 s8, s8, 6
        s_add_u32 s8, s8, s5               ; 64ib+p
        v_lshlrev_b32 v8, 1, v4
        v_add_u32 v8, s8, v8               ; t
        v_lshlrev_b32 v8, 12, v8           ; t*4096
        v_add_u32 v9, 1024, v8             ; Ws[t][512]
        s_lshl_b32 s10, s9, 5
        v_lshlrev_b32 v10, 3, v5
        v_add3_u32 v8, v8, v10, s10""")
        for z in range(2):
            L.append(f"buffer_load_dwordx2 v[{64+4*z}:{65+4*z}], v8, s[52:55], 0 offen offset:{128*z}")
            L.append(f"buffer_load_dwordx2 v[{66+4*z}:{67+4*z}], v8, s[52:55], 0 offen offset:{128*z+16}")
        L.append("buffer_load_ushort v72, v9, s[52:55], 0 offen")
        A(f"""s_lshr_b32 s10, s2, 7
        s_and_b32 s10, s10, s5
        s_cmp_eq_u32 s9, 0
        s_cselect_b32 s10, s10, 0
        s_mul_i32 s10, s10, 0xffff
        v_mov_b32 v73, s10
        v_mov_b32 v10, 0
        v_cmp_eq_u32 vcc, 0, v5
        s_nop 1
        v_cndmask_b32 v73, v10, v73, vcc
        s_lshl_b32 s10, s2, 13
        s_lshl_b32 s11, s70, 10
        s_add_u32 s10, s10, s11
        s_add_u32 s10, s10, {CS}
        v_lshlrev_b32 v10, 4, v1
        v_add_u32 v61, s10, v10""")
    else:
        A('v_lshlrev_b32 v10, 4, v1')
    if g1:
        A(f"""s_lshr_b32 s8, s6, 1              ; j
        s_lshl_b32 s8, s8, 5
        v_add_u32 v11, s8, v4               ; e
        v_mov_b32 v12, 256
        v_cmp_eq_u32 vcc, 0, v11
        s_nop 1
        v_cndmask_b32 v12, v11, v12, vcc
        v_sub_u32 v11, 512, v11
        v_and_b32 v11, 511, v11
        s_and_b32 s8, s6, 1
        s_cmp_eq_u32 s8, 0
        s_cselect_b64 s[64:65], -1, 0
        s_nop 0
        v_cndmask_b32 v11, v11, v12, s[64:65]
        v_lshlrev_b32 v11, 1, v11
        s_lshl_b32 s8, s7, 3
        s_add_u32 s8, s8, s70               ; step (z=0)
        s_lshl_b32 s9, s8, 14
        v_lshlrev_b32 v12, 12, v5
        v_add3_u32 v11, v11, v12, s9
        s_mul_i32 s9, s6, 112
        s_add_u32 s9, s9, s8
        s_lshl_b32 s9, s9, 10
        s_add_u32 s9, s9, {WDT}
        v_add_u32 v62, s9, v10
        s_mov_b32 s64, 8192
        s_mov_b32 s65, 65536
        s_mov_b32 s66, 73728""")
        for z in range(2):
            for e in range(8):
                so = [["0","s64"],["s65","s66"]][z][e >> 2]
                L.append(f"buffer_load_ushort v{80+8*z+e}, v11, s[56:59], {so} offen offset:{(e&3)*1024}")
    return L

def side_store(A, vm, g1):
    vm.wait("side")
    if USE_CS: A("v_bfi_b32 v64, v73, v72, v64")
    if g1:
        for z in range(2):
            for q in range(4):
                A(f"v_lshl_or_b32 v{96+4*z+q}, v{81+8*z+2*q}, 16, v{80+8*z+2*q}")
    for z in range(2 if USE_CS else 0):
        vm.issue("sst", f"buffer_store_dwordx4 v[{64+4*z}:{67+4*z}], v61, s[40:43], 0 offen offset:0" if z == 0 else f"buffer_store_dwordx4 v[68:71], v63, s[40:43], 0 offen")
        if z == 0: A("v_add_u32 v63, 4096, v61")
    if g1:
        vm.issue("sst", "buffer_store_dwordx4 v[96:99], v62, s[40:43], 0 offen")
        A("v_add_u32 v63, 4096, v62")
        vm.issue("sst", "buffer_store_dwordx4 v[100:103], v63, s[40:43], 0 offen")

def consumer(A, steps, reads, mfmas, barrier_after):
    for ins in reads(0): A(ins)
    A("s_waitcnt lgkmcnt(0)")
    if barrier_after(-1): A("s_barrier")
    for st in range(steps):
        rd = reads(st+1) if st+1 < steps else []
        mm = mfmas(st)
        k = 0
        per = -(-len(rd)//len(mm)) if rd else 0
        for j, m in enumerate(mm):
            A(m)
            for _ in range(per):
                if k < len(rd) and j < len(mm)-1 or (k < len(rd) and j == len(mm)-1):
                    A(rd[k]); k += 1
        while k < len(rd):
            A(rd[k]); k += 1
        if rd: A("s_waitcnt lgkmcnt(0)")
        if barrier_after(st): A("s_barrier")

def side_prefetch(A, vm, g1, lab):
    A(f"""s_cmp_eq_u32 s3, 4
    s_cbranch_scc0 {lab}_A
    s_lshr_b32 s8, s2, 2
    s_and_b32 s8, s8, 31
    s_lshr_b32 s9, s8, 4
    s_and_b32 s8, s8, 15
    s_lshl_b32 s8, s8, 6
    s_add_u32 s8, s8, s9
    v_lshlrev_b32 v6, 1, v4
    v_add_u32 v6, s8, v6
    v_lshlrev_b32 v6, 12, v6
    s_and_b32 s9, s2, 3
    s_lshl_b32 s9, s9, 8
    v_lshlrev_b32 v7, 7, v5
    v_add3_u32 v6, v6, v7, s9
    buffer_load_dword v47, v6, s[52:55], 0 offen
    {lab}_A:""")
    if g1:
        A(f"""s_cmp_lt_u32 s3, 4
        s_cbranch_scc0 {lab}_B
        s_lshr_b32 s8, s6, 1
        s_lshl_b32 s8, s8, 6               ; 32j*2 bytes
        s_sub_u32 s9, 960, s8
        s_and_b32 s10, s6, 1
        s_cmp_eq_u32 s10, 0
        s_cselect_b32 s8, s8, s9
        s_lshr_b32 s9, s3, 1
        s_lshl_b32 s9, s9, 6
        s_add_u32 s8, s8, s9
        s_lshl_b32 s9, s7, 7
        s_and_b32 s10, s3, 1
        s_lshl_b32 s10, s10, 6
        s_add_u32 s9, s9, s10
        v_add_u32 v6, s9, v1
        v_lshlrev_b32 v6, 10, v6
        v_add_u32 v6, s8, v6
        buffer_load_dword v47, v6, s[56:59], 0 offen
        {lab}_B:""")
    vm.ops.append("pf")

def gen_k1(name):
    import copy
    A = Asm()
    A(f".p2align 8\n.globl {name}\n.type {name},@function\n{name}:")
    A("s_cmp_ge_u32 s2, 256\ns_cbranch_scc1 K1_END")
    stamp(A, 0)
    for i in range(1,8): stamp(A, i)
    A("s_load_dwordx2 s[16:17], s[0:1], 0\ns_load_dwordx8 s[20:27], s[0:1], 16\ns_load_dwordx8 s[28:35], s[0:1], 48\ns_load_dwordx2 s[18:19], s[0:1], 8\ns_load_dwordx2 s[66:67], s[0:1], 88")
    A("""v_and_b32 v1, 63, v0              ; lane
    v_lshrrev_b32 v2, 6, v0
    s_nop 0
    v_readfirstlane_b32 s3, v2         ; wave 0..7
    v_lshrrev_b32 v2, 4, v1            ; grp
    v_and_b32 v3, 15, v1               ; sub
    v_and_b32 v4, 31, v1               ; n / m
    v_lshrrev_b32 v5, 5, v1            ; h
    s_and_b32 s70, s3, 3               ; lw
    s_mov_b32 s60, 0xffff0000
    s_mov_b32 s61, 0x3b000000          ; 1/512
    v_mov_b32 v39, 0x3727c5ac          ; eps
    v_mov_b32 v38, 0x3f803f80          ; bf16 (1,1)
    s_cmp_ge_u32 s2, 224
    s_cbranch_scc1 K1_STAGE1""")
    def tail_srds():
        srd(A, 40, 66, WS_SIZE)
        srd(A, 56, 32, 0x1C0000)
        A("s_cmp_lt_u32 s2, 128\ns_cselect_b32 s52, s18, s20\ns_cselect_b32 s53, s19, s21\ns_and_b32 s53, s53, 0xffff\ns_mov_b32 s54, 0x800000\ns_mov_b32 s55, 0x20000")
    vm = VM(A)
    A("""s_and_b32 s4, s2, 7               ; xcd
    s_lshr_b32 s5, s2, 3               ; q 0..27
""" + (MAPA if not ALIGN else MAPB) + """
    s_lshr_b32 s8, s3, 2
    s_lshl_b32 s9, s6, 1
    s_add_u32 s8, s8, s9               ; tb
    s_lshr_b32 s9, s8, 4               ; p
    s_and_b32 s8, s8, 15               ; ib
    s_lshl_b32 s8, s8, 6
    s_add_u32 s8, s8, s9               ; 64ib+p
    s_and_b32 s9, s3, 1
    s_lshl_b32 s9, s9, 5
    s_add_u32 s8, s8, s9               ; + 2*16*(w&1)
    s_lshr_b32 s9, s3, 1
    s_and_b32 s9, s9, 1                ; half
    s_cmp_eq_u32 s9, 0
    s_cselect_b64 s[64:65], -1, 0
    v_lshlrev_b32 v6, 1, v2
    v_add_u32 v6, s8, v6
    v_mov_b32 v17, 1024""")
    for rho in range(4):
        A(f"""v_add_u32 v7, {8*rho}, v6          ; t
        v_sub_u32 v16, 2048, v7
        v_cmp_eq_u32 vcc, 0, v7
        s_nop 1
        v_cndmask_b32 v16, v16, v17, vcc
        v_cndmask_b32 v7, v16, v7, s[64:65]
        v_lshlrev_b32 v7, 10, v7
        v_lshl_add_u32 v{34+rho}, v3, 4, v7""")
    A("s_waitcnt lgkmcnt(0)")
    srd(A, 36, 16, 0x200000)
    for rho in range(4):
        for i in range(4):
            vm.issue(f"x{rho}", f"buffer_load_dwordx4 {vr(RW(rho,i),4)}, v{34+rho}, s[36:39], 0 offen offset:{i*256}")
    srd(A, 44, 28, 0x1C0000)
    srd(A, 48, 30, 0x1C0000)
    def g1_pro():
        A(f"""s_and_b32 s8, s3, 1
    s_cmp_eq_u32 s8, 0
    s_cselect_b32 s92, s44, s48
    s_cselect_b32 s93, s45, s49
    s_mov_b32 s94, 0x1C0000
    s_mov_b32 s95, 0x20000
    v_mul_u32_u24 v6, 3584, v2
    v_lshlrev_b32 v7, 2, v2
    v_xor_b32 v7, v7, v3
    v_lshlrev_b32 v7, 4, v7
    s_lshl_b32 s9, s7, 8
    v_add3_u32 v20, v6, v7, s9
    s_lshr_b32 s9, s3, 1
    s_mul_i32 s63, s9, 57344
    s_lshl_b32 s62, s9, 13
    s_lshl_b32 s8, s8, 12
    s_add_u32 s62, s62, s8
    s_add_u32 s62, s62, {RINGA}""")
        for a4 in range(4):
            A(f"s_add_u32 m0, s62, {a4*1024}\ns_add_u32 s8, s63, {a4*4*3584}")
            vm.issue("dma0", "buffer_load_dwordx4 v20, s[92:95], s8 offen lds")
        A("""s_and_b32 s8, s6, 3
    s_lshl_b32 s8, s8, 2
    s_lshr_b32 s9, s3, 1
    s_add_u32 s8, s8, s9
    s_lshl_b32 s8, s8, 5
    v_lshrrev_b32 v6, 1, v1
    v_add_u32 v6, s8, v6
    v_mul_u32_u24 v6, 3584, v6
    v_and_b32 v7, 1, v1
    v_lshlrev_b32 v7, 7, v7
    s_lshl_b32 s9, s7, 8
    v_add3_u32 v6, v6, v7, s9""")
        vm.issue("pf", "buffer_load_dword v47, v6, s[92:95], 0 offen")
        A(f"""s_mul_i32 s8, s70, {4*3584}
    v_add_u32 v20, s8, v20
    s_lshl_b32 s62, s70, 10
    s_add_u32 s62, s62, {RINGA}
    s_mov_b32 s63, {4*57344}""")
    tail_srds()
    A("""s_lshr_b32 s8, s3, 1
    s_lshl_b32 s8, s8, 15
    s_and_b32 s9, s3, 1
    s_lshl_b32 s9, s9, 8
    s_add_u32 s8, s8, s9
    v_lshrrev_b32 v6, 1, v3
    v_lshlrev_b32 v6, 10, v6
    v_and_b32 v7, 1, v3
    v_lshlrev_b32 v7, 9, v7
    v_add3_u32 v6, v6, v7, s8
    v_and_b32 v7, 7, v3
    v_xor_b32 v16, v2, v7
    v_lshl_add_u32 v16, v16, 4, v6
    v_add_u32 v17, 4, v2
    v_xor_b32 v17, v17, v7
    v_lshl_add_u32 v17, v17, 4, v6""")
    stamp(A, 1)
    if PRIO: A("s_cmp_lt_u32 s3, 4\ns_cbranch_scc1 G1_NP\ns_setprio 2\nG1_NP:")
    for pair in ((0,1),(2,3)):
        ln_stats(A, vm, pair)
        for rho in pair:
            for i in range(4):
                for d in range(4):
                    u = U(rho,i,d)
                    A(f"v_pk_fma_f32 {vr(u,2)}, {vr(u,2)}, {vr(40+2*rho,2)}, {vr(48+2*rho,2)} op_sel_hi:[1,0,0]")
                o = RW(rho,i)
                for d in range(4):
                    u = U(rho,i,d)
                    A(f"v_cvt_pk_bf16_f32 v{o+d}, v{u}, v{u+1}")
                A(f"ds_write_b128 v{16+(rho&1)}, {vr(o,4)} offset:{(rho>>1)*128 + i*8192}")
        stamp(A, 2 if pair[0] == 0 else 3)
        if pair[0] == 0: g1_pro()
    vm.wait("dma0")
    A("s_setprio 0")
    A("s_cmp_lt_u32 s3, 4\ns_cbranch_scc1 G1_CONS")
    def g1_dma(n):
        A(f"s_add_u32 m0, s62, {(n%4)*8192}\ns_nop 0")
        vm.issue(f"st{n}", "buffer_load_dwordx4 v20, s[44:47], s63 offen lds")
        A(f"s_add_u32 m0, s62, {(n%4)*8192+4096}\ns_nop 0")
        vm.issue(f"st{n}", "buffer_load_dwordx4 v20, s[48:51], s63 offen lds")
        A("s_add_u32 s63, s63, 57344")
    A("s_waitcnt lgkmcnt(0)")
    for n in range(32):
        if n >= 4: vm.wait(f"st{n}")
        A("s_barrier")
        if n >= 1 and n+3 < 32: g1_dma(n+3)
        if n == 20: SL = side_job(A, vm, True)
        if n >= 28:
            for _ in range(5 if n < 31 else 99):
                if SL: vm.issue("side", SL.pop(0))
        if n == 31: side_store(A, vm, True)
    A("s_branch K1_FIN")
    A("G1_CONS:")
    A(f"""s_lshr_b32 s8, s3, 1              ; wm
    s_and_b32 s9, s3, 1                ; wn
    v_lshrrev_b32 v8, 2, v3            ; r4
    v_and_b32 v9, 3, v3                ; col4
    v_and_b32 v10, 1, v2               ; q&1
    v_lshlrev_b32 v10, 1, v10
    v_lshrrev_b32 v11, 1, v9
    v_add_u32 v10, v10, v11            ; low2
    v_and_b32 v11, 1, v9
    v_lshlrev_b32 v11, 3, v11
    v_lshlrev_b32 v12, 3, v5
    v_add_u32 v12, v12, v8             ; k = 8h + r4
    v_lshlrev_b32 v12, 8, v12
    v_add_u32 v12, {RINGA}, v12
    v_add_u32 v12, v12, v11
    s_lshl_b32 s10, s8, 1
    v_xor_b32 v13, s10, v8
    v_lshl_add_u32 v13, v13, 2, v10
    v_lshl_add_u32 v6, v13, 4, v12
    s_add_u32 s10, s10, 1
    v_xor_b32 v13, s10, v8
    v_lshl_add_u32 v13, v13, 2, v10
    v_lshl_add_u32 v7, v13, 4, v12
    s_lshl_b32 s10, s9, 16
    v_lshlrev_b32 v12, 9, v5
    v_add_u32 v12, s10, v12""")
    for z in range(4):
        A(f"v_add_u32 v13, {2*z}, v5\nv_xor_b32 v13, v13, v4\nv_lshl_add_u32 v{16+z}, v13, 4, v12")
    def rd(st):
        b = FR + 24*(st & 1)
        L = []
        so = (st % 4)*8192
        for nt in range(2):
            L.append(f"ds_read_b128 {vr(b+16+4*nt,4)}, v{16+(st&3)} offset:{st*1024+nt*32768}")
        for mt in range(2):
            for mat in range(2):
                r = b + 8*mt + 4*mat
                L.append(f"ds_read_b64_tr_b16 {vr(r,2)}, v{6+mt} offset:{so+mat*4096}")
                L.append(f"ds_read_b64_tr_b16 {vr(r+2,2)}, v{6+mt} offset:{so+mat*4096+1024}")
        return L
    def mm(st):
        b = FR + 24*(st & 1)
        L = []
        for mt in range(2):
            for mat in range(2):
                for nt in range(2):
                    a = ACC + 16*(4*mt + 2*nt + mat)
                    c = "0" if st == 0 else vr(a,16)
                    L.append(f"v_mfma_f32_32x32x16_bf16 {vr(a,16)}, {vr(b+8*mt+4*mat,4)}, {vr(b+16+4*nt,4)}, {c}")
        return L
    A("s_waitcnt lgkmcnt(0)")
    stamp(A, 4)
    A("s_barrier\ns_setprio 1")
    stamp(A, 5)
    consumer(A, 32, rd, mm, lambda st: st <= 29)
    stamp(A, 6)
    A("s_setprio 0\ns_nop 7\ns_nop 7")
    A(f"""s_lshl_b32 s10, s6, 2
    s_lshl_b32 s11, s9, 1
    s_add_u32 s10, s10, s11
    s_mul_i32 s10, s10, 112
    s_lshl_b32 s11, s7, 3
    s_add_u32 s10, s10, s11
    s_lshl_b32 s11, s8, 2
    s_add_u32 s10, s10, s11
    s_lshl_b32 s10, s10, 10
    s_add_u32 s10, s10, {HF}
    s_add_u32 s11, s10, {112*1024}
    v_lshlrev_b32 v8, 4, v1""")
    for nt in range(2):
        for mt in range(2):
            g = ACC + 16*(4*mt+2*nt); u = g + 16
            for r in range(16): A(f"v_max_f32 v{g+r}, 0, v{g+r}")
            for r in range(0,16,2): A(f"v_pk_mul_f32 {vr(g+r,2)}, {vr(g+r,2)}, {vr(u+r,2)}")
            for r in range(8): A(f"v_cvt_pk_bf16_f32 v{u+r}, v{g+2*r}, v{g+2*r+1}")
            for uu in range(2):
                A(f"buffer_store_dwordx4 {vr(u+4*uu,4)}, v8, s[40:43], s{10+nt} offen offset:{mt*2048+uu*1024}")
    A("s_branch K1_FIN")
    A("K1_STAGE1:")
    vm = VM(A)
    A("""s_sub_u32 s4, s2, 224
    s_and_b32 s5, s4, 1
    s_lshr_b32 s6, s4, 1               ; sb
    s_lshl_b32 s8, s6, 5
    s_lshl_b32 s9, s3, 2
    s_add_u32 s8, s8, s9
    v_add_u32 v6, s8, v2               ; s'
    v_cmp_eq_u32 vcc, 0, v6
    v_sub_u32 v7, 2048, v6
    v_mov_b32 v8, 512
    v_cndmask_b32 v7, v7, v8, vcc      ; r2
    v_sub_u32 v8, 1024, v6             ; r3
    v_add_u32 v9, 1024, v6
    v_mov_b32 v10, 1536
    v_cndmask_b32 v9, v9, v10, vcc     ; r4
    v_lshlrev_b32 v10, 4, v3
    v_lshl_add_u32 v34, v6, 10, v10
    v_lshl_add_u32 v35, v7, 10, v10
    v_lshl_add_u32 v36, v8, 10, v10
    v_lshl_add_u32 v37, v9, 10, v10
    s_mov_b64 s[68:69], vcc            ; s'==0 lanes
    s_waitcnt lgkmcnt(0)""")
    srd(A, 36, 16, 0x200000)
    for rho in range(4):
        for i in range(4):
            vm.issue(f"x{rho}", f"buffer_load_dwordx4 {vr(RW(rho,i),4)}, v{34+rho}, s[36:39], 0 offen offset:{i*256}")
    def s1_pro():
        A(f"""s_cmp_eq_u32 s5, 0
    s_cselect_b32 s44, s22, s24
    s_cselect_b32 s45, s23, s25
    s_cselect_b64 s[64:65], -1, 0      ; cos
    s_and_b32 s45, s45, 0xffff
    s_mov_b32 s46, 0x80000
    s_mov_b32 s47, 0x20000
    v_lshrrev_b32 v6, 2, v1
    v_and_b32 v7, 3, v1
    v_xor_b32 v7, v7, v2
    v_lshlrev_b32 v7, 4, v7            ; c*16
    v_lshl_add_u32 v21, v6, 10, v7
    v_mov_b32 v8, 256
    v_cmp_eq_u32 vcc, 0, v6
    s_and_b64 vcc, vcc, s[64:65]
    s_nop 1
    v_cndmask_b32 v8, v6, v8, vcc
    v_lshl_add_u32 v20, v8, 10, v7
    s_and_b32 s8, s3, 1
    s_cmp_eq_u32 s8, 0
    s_cselect_b64 s[64:65], -1, 0
    s_nop 0
    v_cndmask_b32 v22, v21, v20, s[64:65]
    s_lshr_b32 s9, s3, 1
    s_lshl_b32 s63, s9, 6
    s_lshl_b32 s10, s8, 17
    s_add_u32 s63, s63, s10
    s_lshl_b32 s62, s9, 14
    s_lshl_b32 s10, s8, 13
    s_add_u32 s62, s62, s10
    s_add_u32 s62, s62, {RINGB}""")
        for a8 in range(8):
            A(f"s_add_u32 m0, s62, {a8*1024}\ns_add_u32 s8, s63, {a8*16384}")
            vm.issue("dma0", f"buffer_load_dwordx4 v{22 if a8 == 0 else 21}, s[44:47], s8 offen lds")
        A("""s_lshr_b32 s8, s4, 3
    s_and_b32 s8, s8, 3
    s_lshl_b32 s8, s8, 3
    s_add_u32 s8, s8, s3
    s_lshl_b32 s8, s8, 3
    v_lshrrev_b32 v6, 3, v1
    v_add_u32 v6, s8, v6
    v_and_b32 v7, 7, v1
    v_lshlrev_b32 v7, 7, v7
    v_lshl_add_u32 v6, v6, 10, v7""")
        vm.issue("pf", "buffer_load_dword v47, v6, s[44:47], 0 offen")
        A(f"""s_cmp_eq_u32 s70, 0
    s_cselect_b64 s[64:65], -1, 0
    s_lshl_b32 s8, s70, 16
    v_add_u32 v21, s8, v21
    v_cndmask_b32 v20, v21, v20, s[64:65]
    v_add_u32 v22, {32*1024}, v21
    v_add_u32 v23, {48*1024}, v21
    v_add_u32 v21, {16*1024}, v21
    s_lshl_b32 s62, s70, 12
    s_add_u32 s62, s62, {RINGB}
    s_mov_b32 s63, {4*64}""")
    tail_srds()
    stamp(A, 1)
    ln_stats(A, vm, (0,1))
    s1_pro()
    stamp(A, 2)
    ln_stats(A, vm, (2,3))
    stamp(A, 3)
    A("""s_cmp_eq_u32 s5, 0
    s_cselect_b32 s8, 0x3f800000, 0xbf800000     ; sigma
    s_cselect_b32 s9, 0x3f800000, 0              ; w1,w3 at s'=0
    s_cselect_b32 s10, 0, 0x3f800000             ; w2 at s'=0
    s_cselect_b32 s11, 0, 0xbf800000             ; w4 at s'=0
    v_mov_b32 v6, 1.0
    v_mov_b32 v7, s9
    v_cndmask_b32 v6, v6, v7, s[68:69]
    v_mul_f32 v8, v6, v40
    v_mul_f32 v12, v6, v44
    v_mov_b32 v6, s8
    v_mov_b32 v7, s10
    v_cndmask_b32 v7, v6, v7, s[68:69]
    v_mul_f32 v10, v7, v42
    v_mov_b32 v7, s11
    v_cndmask_b32 v7, v6, v7, s[68:69]
    v_mul_f32 v14, v7, v46
    v_mul_f32 v56, v8, v49
    v_fma_f32 v56, v10, v51, v56       ; cu = -(m1 s1 + m2 s2)
    v_mul_f32 v58, v12, v53
    v_fma_f32 v58, v14, v55, v58       ; cv
    v_add_f32 v60, v50, v54            ; extra-row constant
    s_lshl_b32 s8, s3, 2
    v_add_u32 v6, s8, v2               ; m
    v_and_b32 v7, 7, v3
    v_xor_b32 v6, v6, v7
    v_lshlrev_b32 v6, 4, v6
    v_lshrrev_b32 v7, 1, v3
    v_lshl_add_u32 v6, v7, 10, v6
    v_and_b32 v7, 1, v3
    v_lshl_add_u32 v16, v7, 9, v6      ; LDS write addr
    v_lshlrev_b32 v17, 4, v3
    v_add_u32 v17, %d, v17             ; extra row addr""" % XTRA)
    for i in range(4):
        o = RW(0,i)
        for d in range(4):
            u2, u4 = U(1,i,d), U(3,i,d)
            A(f"v_pk_fma_f32 v[18:19], {vr(u2,2)}, v[42:43], v[60:61] op_sel_hi:[1,0,0]")
            A(f"v_pk_fma_f32 v[18:19], {vr(u4,2)}, v[46:47], v[18:19] op_sel_hi:[1,0,1]")
            A(f"v_cvt_pk_bf16_f32 v{o+d}, v18, v19")
        A("s_mov_b64 exec, s[90:91]") if False else None
    A("s_cmp_eq_u32 s3, 0\ns_cbranch_scc0 S1_NOX")
    A("s_mov_b64 s[90:91], exec\ns_mov_b32 exec_lo, 0xffff\ns_mov_b32 exec_hi, 0")
    for i in range(4):
        A(f"ds_write_b128 v17, {vr(RW(0,i),4)} offset:{i*256}")
    A("s_mov_b64 exec, s[90:91]\nS1_NOX:")
    for i in range(4):
        o1, o2 = RW(1,i), RW(2,i)
        for d in range(4):
            u1,u2,u3,u4 = (U(r,i,d) for r in range(4))
            A(f"v_pk_fma_f32 {vr(u1,2)}, {vr(u1,2)}, v[8:9], v[56:57] op_sel_hi:[1,0,0]")
            A(f"v_pk_fma_f32 {vr(u3,2)}, {vr(u3,2)}, v[12:13], v[58:59] op_sel_hi:[1,0,0]")
            A(f"v_pk_fma_f32 {vr(u1,2)}, {vr(u2,2)}, v[10:11], {vr(u1,2)} op_sel_hi:[1,0,1]")
            A(f"v_pk_fma_f32 {vr(u3,2)}, {vr(u4,2)}, v[14:15], {vr(u3,2)} op_sel_hi:[1,0,1]")
            A(f"v_pk_add_f32 {vr(u2,2)}, {vr(u1,2)}, {vr(u3,2)}")
            A(f"v_pk_add_f32 {vr(u4,2)}, {vr(u1,2)}, {vr(u3,2)} neg_lo:[0,1] neg_hi:[0,1]")
            A(f"v_cvt_pk_bf16_f32 v{o1+d}, v{u2}, v{u2+1}")
            A(f"v_cvt_pk_bf16_f32 v{o2+d}, v{u4}, v{u4+1}")
        A(f"ds_write_b128 v16, {vr(o1,4)} offset:{i*8192}")
        A(f"ds_write_b128 v16, {vr(o2,4)} offset:{i*8192+32768}")
    vm.wait("dma0")
    A("s_cmp_lt_u32 s3, 4\ns_cbranch_scc1 S1_CONS")
    def s1_dma(n):
        for a in range(4):
            A(f"s_add_u32 m0, s62, {(n%4)*16384+a*1024}\ns_nop 0")
            vm.issue(f"st{n}", f"buffer_load_dwordx4 v{20+a}, s[44:47], s63 offen lds")
        A("s_add_u32 s63, s63, 64")
    A("s_waitcnt lgkmcnt(0)")
    for n in range(16):
        if n >= 4: vm.wait(f"st{n}")
        A("s_barrier")
        if n >= 1 and n+3 < 16: s1_dma(n+3)
        if n == 8 and USE_CS: SL = side_job(A, vm, False)
        if n == 13:
            while SL: vm.issue("side", SL.pop(0))
        if n == 15 and USE_CS: side_store(A, vm, False)
    A("s_branch K1_FIN")
    A("S1_CONS:")
    A(f"""s_lshl_b32 s8, s3, 6
    v_add_u32 v8, s8, v4
    v_lshlrev_b32 v8, 6, v8
    v_add_u32 v8, {RINGB}, v8
    v_lshrrev_b32 v9, 2, v4
    v_and_b32 v9, 3, v9
    v_xor_b32 v9, v9, v5
    v_lshl_add_u32 v6, v9, 4, v8
    v_xor_b32 v9, 2, v9
    v_lshl_add_u32 v7, v9, 4, v8
    v_lshlrev_b32 v12, 9, v5
    v_lshlrev_b32 v20, 4, v5
    v_add_u32 v20, {XTRA}, v20""")
    for z in range(4):
        A(f"v_add_u32 v13, {2*z}, v5\nv_xor_b32 v13, v13, v4\nv_lshl_add_u32 v{16+z}, v13, 4, v12")
    def rd1(st):
        b = FR + 24*(st & 1)
        n, uu = st >> 1, st & 1
        L = [f"ds_read_b128 {vr(b,4)}, v{16+(st&3)} offset:{st*1024}",
             f"ds_read_b128 {vr(b+12,4)}, v{6+uu} offset:{(n%4)*16384}",
             f"ds_read_b128 {vr(b+4,4)}, v{16+(st&3)} offset:{st*1024+32768}",
             f"ds_read_b128 {vr(b+16,4)}, v{6+uu} offset:{(n%4)*16384+2048}",
             f"ds_read_b128 {vr(b+8,4)}, v20 offset:{st*32}"]
        return L
    def mm1(st):
        b = FR + 24*(st & 1)
        L = []
        for mt in range(3):
            for nt in range(2):
                a = ACC + 16*(2*mt+nt)
                c = "0" if st == 0 else vr(a,16)
                L.append(f"v_mfma_f32_32x32x16_bf16 {vr(a,16)}, {vr(b+4*mt,4)}, {vr(b+12+4*nt,4)}, {c}")
        return L
    A("s_waitcnt lgkmcnt(0)")
    stamp(A, 4)
    A("s_barrier")
    stamp(A, 5)
    consumer(A, 32, rd1, mm1, lambda st: st >= 0 and (st & 1) == 0 and st//2+1 <= 15)
    stamp(A, 6)
    A("s_nop 7\ns_nop 7")
    A(f"""s_lshl_b32 s8, s5, 1
    s_add_u32 s9, s8, s5
    s_sub_u32 s10, 1, s5
    s_add_u32 s10, s10, s8
    s_lshl_b32 s11, s3, 1              ; j0
    s_lshl_b32 s9, s9, 3
    s_add_u32 s9, s9, s11
    s_lshl_b32 s9, s9, 5
    s_lshl_b32 s10, s10, 3
    s_add_u32 s10, s10, s11
    s_lshl_b32 s10, s10, 5
    s_lshl_b32 s11, s6, 1
    s_add_u32 s9, s9, s11
    s_add_u32 s10, s10, s11
    s_lshl_b32 s9, s9, 10
    s_lshl_b32 s10, s10, 10
    s_add_u32 s9, s9, {AB}
    s_add_u32 s10, s10, {AB}
    s_add_u32 s12, s9, 32768
    s_add_u32 s13, s10, 32768
    v_lshlrev_b32 v8, 4, v1""")
    for mt in range(2):
        for nt in range(2):
            a = ACC + 16*(2*mt+nt)
            o = FR + 8*(2*mt+nt)
            for r in range(8): A(f"v_cvt_pk_bf16_f32 v{o+r}, v{a+2*r}, v{a+2*r+1}")
            so = [["s9","s12"],["s10","s13"]][mt][nt]
            for uu in range(2):
                A(f"buffer_store_dwordx4 {vr(o+4*uu,4)}, v8, s[40:43], {so} offen offset:{uu*1024}")
    A(f"""s_cmp_eq_u32 s4, 0
    s_cbranch_scc0 K1_FIN
    s_lshl_b32 s8, s3, 8
    s_add_u32 s8, s8, {A512}
    v_lshlrev_b32 v8, 2, v4
    s_mov_b64 s[68:69], exec
    s_mov_b32 exec_lo, -1
    s_mov_b32 exec_hi, 0
    buffer_store_dword v{ACC+64}, v8, s[40:43], s8 offen
    buffer_store_dword v{ACC+80}, v8, s[40:43], s8 offen offset:128
    s_mov_b64 exec, s[68:69]""")
    A("K1_FIN:")
    if INSTR:
        A("s_waitcnt vmcnt(0)")
        stamp(A, 7)
        stamp_dump(A, (0, 100, 224, 255), 8) if INSTR != 3 else stamp_dump(A, (0,1,31,100,200,223,224,255), 8, waves=(0,))
    A("K1_END:\ns_endpgm")
    return A.text()
```

```python
from common import *
import os

DEPTH = int(os.environ.get('DEPTH', '8'))
DD = 176
NSTEP = 36
RING0 = 40
XV = 20
USE_CS = int(os.environ.get('USE_CS', '0'))
GEN0 = int(os.environ.get('GEN0', '3'))
AF = 96
def gen_k2(name):
    A = Asm()
    A(f".p2align 8\n.globl {name}\n.type {name},@function\n{name}:")
    A("s_cmp_ge_u32 s2, 256\ns_cbranch_scc1 K2_END")
    for i in range(8): stamp(A, i)
    A("s_load_dwordx2 s[16:17], s[0:1], 0\ns_load_dwordx2 s[18:19], s[0:1], 72\ns_load_dwordx2 s[20:21], s[0:1], 88")
    A("v_and_b32 v1, 63, v0\nv_lshrrev_b32 v2, 6, v0\ns_nop 0\nv_readfirstlane_b32 s3, v2")
    A("""s_and_b32 s4, s2, 7
    s_lshr_b32 s5, s2, 3
    s_and_b32 s6, s4, 1            ; p
    s_lshr_b32 s7, s4, 1
    s_lshl_b32 s7, s7, 2
    s_and_b32 s8, s5, 3
    s_add_u32 s7, s7, s8           ; ib
    s_lshr_b32 s8, s5, 2           ; j
    s_lshl_b32 s9, s6, 4
    s_add_u32 s9, s9, s7           ; tb
    s_lshr_b32 s10, s3, 1
    s_and_b32 s11, s3, 1           ; nt = w&1
    s_waitcnt lgkmcnt(0)""")
    srd(A, 24, 16, 0x200000)
    srd(A, 28, 18, 0x200000)
    srd(A, 32, 20, WS_SIZE)
    A(f"""s_mul_i32 s36, s9, {2*112*1024}
    s_mul_i32 s12, s3, {28*1024}
    s_add_u32 s36, s36, s12
    s_add_u32 s36, s36, {HF}
    s_add_u32 s37, s36, {112*1024}
    s_mul_i32 s38, s8, {2*112*1024}
    s_add_u32 s38, s38, s12
    s_add_u32 s38, s38, {WDT}
    s_add_u32 s39, s38, {112*1024}""")
    A(f"""s_lshl_b32 s56, s10, 5
    s_add_u32 s56, s56, s9
    s_lshl_b32 s56, s56, 15
    s_lshl_b32 s12, s11, 14
    s_add_u32 s56, s56, s12
    s_add_u32 s56, s56, {CS}
    s_lshl_b32 s57, s10, 1
    s_add_u32 s57, s57, s6
    s_lshl_b32 s57, s57, 3
    s_add_u32 s57, s57, s8
    s_lshl_b32 s57, s57, 15
    s_add_u32 s57, s57, s12
    s_add_u32 s57, s57, {AB}""")
    A("v_lshlrev_b32 v2, 4, v1          ; lane*16")
    def LATE():
        A("""v_and_b32 v3, 31, v1
    v_lshrrev_b32 v4, 5, v1
    s_lshl_b32 s12, s8, 5
    v_add_u32 v5, s12, v3              ; e = 32j+n
    v_mov_b32 v6, 256
    v_cmp_eq_u32 vcc, 0, v5
    s_nop 1
    v_cndmask_b32 v6, v5, v6, vcc
    v_sub_u32 v7, 512, v5
    v_and_b32 v7, 511, v7
    s_cmp_eq_u32 s11, 0
    s_cselect_b64 s[58:59], -1, 0
    s_nop 0
    v_cndmask_b32 v6, v7, v6, s[58:59]  ; col
    v_lshlrev_b32 v6, 1, v6
    v_mov_b32 v8, 1.0
    v_mov_b32 v9, 0
    s_andn2_b64 s[60:61], vcc, s[58:59]
    s_nop 1
    v_cndmask_b32 v8, v8, v9, s[60:61]
    s_lshl_b32 s12, s7, 6
    s_add_u32 s12, s12, s6
    v_lshlrev_b32 v9, 3, v4
    v_add_u32 v9, s12, v9
    v_sub_u32 v10, 1994, v9
    s_cmp_eq_u32 s10, 0
    s_cselect_b64 s[58:59], -1, 0
    s_nop 1
    v_cndmask_b32 v9, v10, v9, s[58:59]
    v_lshlrev_b32 v9, 10, v9
    v_add_u32 v9, v9, v6
    s_cmp_eq_u32 s9, 0
    s_cselect_b32 s12, s10, 0
    s_lshl_b32 s13, s12, 20
    v_mov_b32 v10, s13
    v_mov_b32 v11, 0
    v_cmp_eq_u32 vcc, 0, v4
    s_nop 1
    v_cndmask_b32 v10, v11, v10, vcc
    v_sub_u32 v10, v9, v10
    v_mov_b32 v12, s12
    v_cndmask_b32 v12, v11, v12, vcc
    """)
        for r in range(16):
            off = 16*(r>>2) + 2*(r&3)
            A(f"s_mov_b32 s12, {off*1024}\ns_mov_b32 s13, {(54-off)*1024}\ns_cmp_eq_u32 s10, 0\ns_cselect_b32 s{40+r}, s12, s13")

    vm = VM(A)
    def slot(st): return RING0 + 16*(st % DEPTH)
    def loads(st):
        b = slot(st); tg = f"s{st}"
        if st < 28:
            o = (st & 3)*1024
            for q, s in enumerate((36, 38, 37, 39)):
                r = (0, 8, 4, 12)[q]
                vm.issue(tg, f"buffer_load_dwordx4 {vr(b+r,4)}, v2, s[32:35], s{s} offen offset:{o}")
            if (st & 3) == 3:
                for s in (36, 37, 38, 39): A(f"s_add_u32 s{s}, s{s}, 4096")
        else:
            u = st - 28
            o = (u & 1)*2048
            if USE_CS: vm.issue(tg, f"buffer_load_dwordx4 {vr(b,4)}, v2, s[32:35], s56 offen offset:{o}")
            vm.issue(tg, f"buffer_load_dwordx4 {vr(b+4,4)}, v2, s[32:35], s57 offen offset:{o}")
            if USE_CS: vm.issue(tg, f"buffer_load_dwordx4 {vr(b+8,4)}, v2, s[32:35], s56 offen offset:{o+1024}")
            vm.issue(tg, f"buffer_load_dwordx4 {vr(b+12,4)}, v2, s[32:35], s57 offen offset:{o+1024}")
            if u & 1: A("s_add_u32 s56, s56, 4096\ns_add_u32 s57, s57, 4096")
    def mfmas(st):
        b = slot(st)
        if st < 28:
            for mt in range(2):
                for nt in range(2):
                    a = 16*(2*mt+nt)
                    c = "0" if st == 0 else ar(a,16)
                    A(f"v_mfma_f32_32x32x16_bf16 {ar(a,16)}, {vr(b+4*mt,4)}, {vr(b+8+4*nt,4)}, {c}")
        else:
            f = st == 28
            u = st - 28
            A0 = vr(b,4) if USE_CS else ar(AF+8*u,4)
            A1 = vr(b+8,4) if USE_CS else ar(AF+8*u+4,4)
            A(f"v_mfma_f32_32x32x16_bf16 a[64:79], {A0}, {vr(b+4,4)}, {'0' if f else 'a[64:79]'}")
            A(f"v_mfma_f32_32x32x16_bf16 a[80:95], v[16:19], {vr(b+4,4)}, {'0' if f else 'a[80:95]'}")
            A(f"v_mfma_f32_32x32x16_bf16 a[64:79], {A1}, {vr(b+12,4)}, a[64:79]")
            A(f"v_mfma_f32_32x32x16_bf16 a[80:95], v[16:19], {vr(b+12,4)}, a[80:95]")
    def late_setup():
        LATE()
        A(f"""s_lshl_b32 s12, s8, 7
        s_add_u32 s12, s12, {A512}
        v_lshlrev_b32 v11, 2, v3""")
        vm.issue("x", "buffer_load_dword v13, v11, s[32:35], s12 offen")
        for r in range(16):
            vm.issue("x", f"buffer_load_ushort v{XV+r}, v{10 if r == 0 else 9}, s[24:27], s{40+r} offen")
        A("""v_mov_b32 v14, 0xBF803F80
        v_mov_b32 v15, 0
        v_cmp_eq_u32 vcc, 0, v3
        s_nop 1
        v_cndmask_b32 v16, v15, v14, vcc
        v_cndmask_b32 v17, v15, v14, vcc
        v_cndmask_b32 v18, v15, v14, vcc
        v_cndmask_b32 v19, v15, v14, vcc""")
        A("s_lshl_b32 s12, s3, 14\nv_add_u32 v11, s12, v2          ; w*16K + lane*16")
        A("s_lshl_b32 s12, s3, 12\ns_add_u32 s13, s12, 65536\nv_add_u32 v14, s13, v2\nv_add_u32 v38, s12, v2")
        A("s_lshl_b32 s12, s3, 8\ns_add_u32 s12, s12, 81920\nv_lshlrev_b32 v15, 2, v1\nv_add_u32 v15, s12, v15")
    def gen_setup():
        A("""s_lshl_b32 s12, s7, 6
        s_add_u32 s12, s12, s6
        v_lshlrev_b32 v245, 1, v3
        v_add_u32 v245, s12, v245
        v_cvt_f32_u32 v245, v245
        v_mul_f32 v245, 0xba000000, v245
        s_lshl_b32 s12, s11, 8
        v_lshlrev_b32 v244, 2, v4
        v_add_u32 v244, s12, v244
        v_cvt_f32_u32 v244, v244
        s_cmp_eq_u32 s10, 0
        s_cselect_b32 s12, 0x3e800000, 0
        v_mov_b32 v246, s12
        v_fma_f32 v244, v245, v244, v246
        s_andn2_b32 s12, s10, s11
        s_cmp_eq_u32 s12, 1
        s_cselect_b32 s12, 0x44000000, 0
        v_mov_b32 v246, s12
        v_mov_b32 v247, 0
        v_cmp_eq_u32 vcc, 0, v4
        s_nop 1
        v_cndmask_b32 v246, v247, v246, vcc
        v_fma_f32 v246, v245, v246, v244""")
    def gen_frag(j):
        import struct
        T = 168
        for e in range(8):
            K = 16*j + 8*(e >> 2) + (e & 3)
            if K == 0:
                A(f"v_mov_b32 v{T}, v246")
            else:
                A(f"v_fmamk_f32 v{T+e}, v245, 0x{struct.unpack('<I', struct.pack('<f', float(K)))[0]:08x}, v244")
        for e in range(8): A(f"v_sin_f32 v{T+e}, v{T+e}")
        for d in range(4): A(f"v_cvt_pk_bf16_f32 v{240+d}, v{T+2*d}, v{T+2*d+1}")
        for d in range(4): A(f"v_accvgpr_write_b32 a{AF+4*j+d}, v{240+d}")
    for st in range(DEPTH): loads(st)
    stamp(A, 1)
    DR = 232
    for st in range(NSTEP):
        if st == 1: stamp(A, 2)
        if st == 14: stamp(A, 3)
        if st == 28: stamp(A, 4)
        vm.wait(f"s{st}")
        mfmas(st)
        if st + DEPTH < NSTEP: loads(st+DEPTH)
        if st == 2:
            late_setup()
            if not USE_CS: gen_setup()
        if not USE_CS and GEN0 <= st < GEN0 + 16: gen_frag(st - GEN0)
        if st == 28:
            A("s_nop 7\ns_nop 3")
            for qd in range(4):
                for g in range(4):
                    A(f"ds_write_b128 v11, {ar(16*qd+4*g,4)} offset:{(qd*4+g)*1024}")
        if st == 31:
            A("s_waitcnt lgkmcnt(0)\ns_barrier")
            for src in range(4):
                for g in range(4):
                    A(f"ds_read_b128 {vr(DD+16*src+4*g,4)}, v38 offset:{src*16384+g*1024}")
        if st == 33:
            A("s_waitcnt lgkmcnt(0)")
            D = DD
            for r in range(0,16,2):
                A(f"v_pk_add_f32 {vr(D+r,2)}, {vr(D+r,2)}, {vr(D+16+r,2)}\nv_pk_add_f32 {vr(D+32+r,2)}, {vr(D+32+r,2)}, {vr(D+48+r,2)}")
            for r in range(0,16,2):
                A(f"v_pk_add_f32 {vr(D+r,2)}, {vr(D+r,2)}, {vr(D+32+r,2)}")
            T = D+16
            for r in range(16): A(f"v_mul_f32 v{T+r}, 0xbfb8aa3b, v{D+r}")
            for r in range(16): A(f"v_exp_f32 v{T+r}, v{T+r}")
            for r in range(16): A(f"v_add_f32 v{T+r}, 1.0, v{T+r}")
        if st == 34:
            D = DD; T = D+16
            for r in range(16): A(f"v_rcp_f32 v{T+r}, v{T+r}")
            vm.wait("x")
            for r in range(16): A(f"v_mul_f32 v{D+r}, v{D+r}, v8\nv_lshlrev_b32 v{XV+r}, 16, v{XV+r}")
            for r in range(16): A(f"v_mul_f32 v{D+r}, v{D+r}, v{T+r}")
    stamp(A, 5)
    A("s_nop 7\ns_nop 7")
    for g in range(4):
        A(f"ds_write_b128 v14, {ar(64+4*g,4)} offset:{g*1024}")
    A("ds_write_b32 v15, a80")
    A("v_add_u32 v14, 65536, v2\nv_lshlrev_b32 v15, 2, v3\nv_add_u32 v15, 81920, v15")
    A("s_waitcnt lgkmcnt(0)\ns_barrier")
    R = RING0
    for src in range(4):
        for g in range(4):
            A(f"ds_read_b128 {vr(R+16*src+4*g,4)}, v14 offset:{src*4096+g*1024}")
    A(f"ds_read_b32 v36, v15\nds_read_b32 v37, v15 offset:256")
    A("""s_cmp_eq_u32 s10, s11
    s_cselect_b32 s12, 0xbf800000, 0x3f800000
    s_cmp_eq_u32 s6, 0
    s_cselect_b32 s13, 0x3f800000, 0
    v_mul_f32 v13, s13, v13
    s_waitcnt lgkmcnt(0)""")
    D, P = DD, R
    for r in range(0,16,2):
        A(f"v_pk_add_f32 {vr(P+r,2)}, {vr(P+r,2)}, {vr(P+16+r,2)}\nv_pk_add_f32 {vr(P+32+r,2)}, {vr(P+32+r,2)}, {vr(P+48+r,2)}")
    for r in range(16):
        op = "v_add_f32" if (r & 1) == 0 else "v_sub_f32"
        A(f"{op} v{P+r}, v{P+r}, v13")
    for r in range(16):
        A(f"v_fma_f32 v{P+r}, s12, v{P+32+r}, v{P+r}")
    A(f"""v_add_f32 v36, v36, v37
    v_add_f32 v36, v36, v13
    v_cmp_ne_u32 vcc, 0, v12
    s_nop 1
    v_cndmask_b32 v{P}, v{P}, v36, vcc""")
    stamp(A, 6)
    for r in range(16):
        A(f"v_fma_f32 v{D+r}, v{D+r}, v{P+r}, v{XV+r}")
    for r in range(16):
        A(f"v_cvt_pk_bf16_f32 v{D+r}, v{D+r}, v{D+r}")
    for r in range(16):
        A(f"buffer_store_short v{D+r}, v{10 if r == 0 else 9}, s[28:31], s{40+r} offen")
    if INSTR:
        A("s_waitcnt vmcnt(0)")
        if INSTR in (1,3): stamp(A, 7)
        stamp_dump(A, (0, 77, 130, 255), 8, waves=(0,3)) if INSTR != 3 else stamp_dump(A, (0,1,31,77,130,200,254,255), 8, waves=(0,))
    A("K2_END:\ns_endpgm")
    assert RING0 + 16*DEPTH <= DD
    return A.text(), 256
```

```python
import sys
sys.path.insert(0, "gen")
from common import *
import k1, k2
hdr = open(f"cdna_kernels/{NAME}.s.ref").read().split("; Override launch")[0]
K1 = NAME + "_kernel"; K2 = "fnet_glu_combine_kernel"
t2, nv2 = k2.gen_k2(K2)
s = hdr
s += f"; @launch kernel={K1} grid=(256,1,1) block=(512,1,1) lds=163840\n"
s += f"; @launch kernel={K2} grid=(256,1,1) block=(256,1,1) lds=83968\n"
s += '.amdgcn_target "amdgcn-amd-amdhsa--gfx950"\n.text\n'
import os, re
t1 = k1.gen_k1(K1)
SC = os.environ.get("SC", "")
if SC:
    t1 = re.sub(r"(buffer_store_dword\S* [^\n;]*offen(?: offset:\d+)?)", lambda m: m.group(1) + " " + SC, t1)
s += t1 + t2
s += descriptor(K1, 256, 256) + descriptor(K2, 256+(96 if k2.USE_CS else 160), 256)
out = sys.argv[1] if len(sys.argv) > 1 else f"cdna_kernels/{NAME}.s"
open(out, "w").write(s)
print("written", out, len(s))
```

```python
from common import *

U0, RAW = 64, 192
ACC = 128
PRIO = int(os.environ.get('PRIO', '1'))
ALIGN = int(os.environ.get("ALIGN", "0"))
MAPA = """s_and_b32 s6, s4, 3
    s_lshl_b32 s6, s6, 2
    s_and_b32 s7, s5, 3
    s_add_u32 s6, s6, s7               ; rb
    s_lshr_b32 s7, s4, 2
    s_mul_i32 s7, s7, 7
    s_lshr_b32 s8, s5, 2
    s_add_u32 s7, s7, s8               ; cb"""
MAPB = """s_and_b32 s6, s4, 1
    s_lshl_b32 s6, s6, 3
    s_lshr_b32 s7, s4, 1
    s_lshl_b32 s7, s7, 1
    s_add_u32 s6, s6, s7
    s_and_b32 s7, s5, 1
    s_add_u32 s6, s6, s7               ; rb = 8(x&1) + 2(x>>1) + (q&1)
    s_lshr_b32 s7, s5, 1               ; cb"""
FR = 64
RINGA = 131072
RINGB = 69632
XTRA = 65536

def U(rho, i, d): return U0 + 32*rho + 8*i + 2*d
def RW(rho, i): return RAW + 16*rho + 4*i

def ln_stats(A, vm, rhos):
    S = [24, 26, 28, 30]
    for rho in rhos:
        vm.wait(f"x{rho}")
        k = 0
        for i in range(4):
            for d in range(4):
                r = RW(rho,i)+d
                sa, sq = S[rho] + 0, S[rho] + 1
                t = 32 + 2*(rho & 1)
                if k & 1: sa, sq = t, t+1
                c0 = "0" if k < 2 else None
                A(f"v_dot2_f32_bf16 v{sa}, v{r}, v38, {c0 or 'v%d' % sa}")
                A(f"v_dot2_f32_bf16 v{sq}, v{r}, v{r}, {c0 or 'v%d' % sq}")
                k += 1
        for i in range(4):
            for d in range(4):
                A(f"v_lshlrev_b32 v{U(rho,i,d)}, 16, v{RW(rho,i)+d}")
                A(f"v_and_b32 v{U(rho,i,d)+1}, s60, v{RW(rho,i)+d}")
        A(f"v_add_f32 v{S[rho]}, v{S[rho]}, v{32+2*(rho&1)}\nv_add_f32 v{S[rho]+1}, v{S[rho]+1}, v{33+2*(rho&1)}")
    for ror in (8, 4, 2, 1):
        for rho in rhos:
            for q in range(2):
                A(f"v_add_f32_dpp v{S[rho]+q}, v{S[rho]+q}, v{S[rho]+q} row_ror:{ror} row_mask:0xf bank_mask:0xf")
    for rho in rhos: A(f"v_mul_f32 v{49+2*rho}, 0xbb000000, v{S[rho]}")
    for rho in rhos: A(f"v_fma_f32 v{S[rho]+1}, v{S[rho]+1}, s61, v39")
    for rho in rhos: A(f"v_fma_f32 v{S[rho]+1}, -v{49+2*rho}, v{49+2*rho}, v{S[rho]+1}")
    for rho in rhos: A(f"v_max_f32 v{S[rho]+1}, v{S[rho]+1}, v39")
    A("s_nop 0")
    for rho in rhos: A(f"v_rsq_f32 v{40+2*rho}, v{S[rho]+1}")
    A("s_nop 0")
    for rho in rhos: A(f"v_mul_f32 v{48+2*rho}, v{49+2*rho}, v{40+2*rho}")

SIDE0 = int(os.environ.get('SIDE0', '12'))
SSC = os.environ.get('SSC', '')
USE_CS = int(os.environ.get('USE_CS', '0'))
def side_job(A, vm, g1):
    L = []
    if USE_CS:
        A(f"""s_lshr_b32 s4, s2, 2
        s_and_b32 s4, s4, 31               ; tb
        s_lshr_b32 s5, s4, 4               ; p
        s_and_b32 s8, s4, 15               ; ib
        s_and_b32 s9, s2, 3
        s_lshl_b32 s9, s9, 3
        s_add_u32 s9, s9, s70              ; step (z=0)
        s_lshl_b32 s8, s8, 6
        s_add_u32 s8, s8, s5               ; 64ib+p
        v_lshlrev_b32 v8, 1, v4
        v_add_u32 v8, s8, v8               ; t
        v_lshlrev_b32 v8, 12, v8           ; t*4096
        v_add_u32 v9, 1024, v8             ; Ws[t][512]
        s_lshl_b32 s10, s9, 5
        v_lshlrev_b32 v10, 3, v5
        v_add3_u32 v8, v8, v10, s10""")
        for z in range(2):
            L.append(f"buffer_load_dwordx2 v[{64+4*z}:{65+4*z}], v8, s[52:55], 0 offen offset:{128*z}")
            L.append(f"buffer_load_dwordx2 v[{66+4*z}:{67+4*z}], v8, s[52:55], 0 offen offset:{128*z+16}")
        L.append("buffer_load_ushort v72, v9, s[52:55], 0 offen")
        A(f"""s_lshr_b32 s10, s2, 7
        s_and_b32 s10, s10, s5
        s_cmp_eq_u32 s9, 0
        s_cselect_b32 s10, s10, 0
        s_mul_i32 s10, s10, 0xffff
        v_mov_b32 v73, s10
        v_mov_b32 v10, 0
        v_cmp_eq_u32 vcc, 0, v5
        s_nop 1
        v_cndmask_b32 v73, v10, v73, vcc
        s_lshl_b32 s10, s2, 13
        s_lshl_b32 s11, s70, 10
        s_add_u32 s10, s10, s11
        s_add_u32 s10, s10, {CS}
        v_lshlrev_b32 v10, 4, v1
        v_add_u32 v61, s10, v10""")
    else:
        A('v_lshlrev_b32 v10, 4, v1')
    if g1:
        A(f"""s_lshr_b32 s8, s6, 1              ; j
        s_lshl_b32 s8, s8, 5
        v_add_u32 v11, s8, v4               ; e
        v_mov_b32 v12, 256
        v_cmp_eq_u32 vcc, 0, v11
        s_nop 1
        v_cndmask_b32 v12, v11, v12, vcc
        v_sub_u32 v11, 512, v11
        v_and_b32 v11, 511, v11
        s_and_b32 s8, s6, 1
        s_cmp_eq_u32 s8, 0
        s_cselect_b64 s[64:65], -1, 0
        s_nop 0
        v_cndmask_b32 v11, v11, v12, s[64:65]
        v_lshlrev_b32 v11, 1, v11
        s_lshl_b32 s8, s7, 3
        s_add_u32 s8, s8, s70               ; step (z=0)
        s_lshl_b32 s9, s8, 14
        v_lshlrev_b32 v12, 12, v5
        v_add3_u32 v11, v11, v12, s9
        s_mul_i32 s9, s6, 112
        s_add_u32 s9, s9, s8
        s_lshl_b32 s9, s9, 10
        s_add_u32 s9, s9, {WDT}
        v_add_u32 v62, s9, v10
        s_mov_b32 s64, 8192
        s_mov_b32 s65, 65536
        s_mov_b32 s66, 73728""")
        for z in range(2):
            for e in range(8):
                so = [["0","s64"],["s65","s66"]][z][e >> 2]
                L.append(f"buffer_load_ushort v{80+8*z+e}, v11, s[56:59], {so} offen offset:{(e&3)*1024}")
    return L

def side_store(A, vm, g1):
    vm.wait("side")
    if USE_CS: A("v_bfi_b32 v64, v73, v72, v64")
    if g1:
        for z in range(2):
            for q in range(4):
                A(f"v_lshl_or_b32 v{96+4*z+q}, v{81+8*z+2*q}, 16, v{80+8*z+2*q}")
    for z in range(2 if USE_CS else 0):
        vm.issue("sst", f"buffer_store_dwordx4 v[{64+4*z}:{67+4*z}], v61, s[40:43], 0 offen offset:0" if z == 0 else f"buffer_store_dwordx4 v[68:71], v63, s[40:43], 0 offen")
        if z == 0: A("v_add_u32 v63, 4096, v61")
    if g1:
        vm.issue("sst", "buffer_store_dwordx4 v[96:99], v62, s[40:43], 0 offen " + SSC)
        A("v_add_u32 v63, 4096, v62")
        vm.issue("sst", "buffer_store_dwordx4 v[100:103], v63, s[40:43], 0 offen " + SSC)

def consumer(A, steps, reads, mfmas, barrier_after):
    for ins in reads(0): A(ins)
    A("s_waitcnt lgkmcnt(0)")
    if barrier_after(-1): A("s_barrier")
    for st in range(steps):
        rd = reads(st+1) if st+1 < steps else []
        mm = mfmas(st)
        k = 0
        per = -(-len(rd)//len(mm)) if rd else 0
        for j, m in enumerate(mm):
            A(m)
            for _ in range(per):
                if k < len(rd) and j < len(mm)-1 or (k < len(rd) and j == len(mm)-1):
                    A(rd[k]); k += 1
        while k < len(rd):
            A(rd[k]); k += 1
        if rd: A("s_waitcnt lgkmcnt(0)")
        if barrier_after(st): A("s_barrier")

def side_prefetch(A):
    A("""s_lshr_b32 s8, s6, 1
    s_lshl_b32 s8, s8, 6               ; 32j*2 bytes
    s_sub_u32 s9, 960, s8
    s_and_b32 s10, s6, 1
    s_cmp_eq_u32 s10, 0
    s_cselect_b32 s8, s8, s9
    s_lshr_b32 s9, s3, 1
    s_lshl_b32 s9, s9, 6
    s_add_u32 s8, s8, s9
    s_lshl_b32 s9, s7, 7
    s_and_b32 s10, s3, 1
    s_lshl_b32 s10, s10, 6
    s_add_u32 s9, s9, s10
    v_add_u32 v113, s9, v1
    v_lshlrev_b32 v113, 10, v113
    v_add_u32 v113, s8, v113
    buffer_load_dword v112, v113, s[56:59], 0 offen""")

def gen_k1(name):
    import copy
    A = Asm()
    A(f".p2align 8\n.globl {name}\n.type {name},@function\n{name}:")
    A("s_cmp_ge_u32 s2, 256\ns_cbranch_scc1 K1_END")
    stamp(A, 0)
    for i in range(1,8): stamp(A, i)
    A("s_load_dwordx2 s[16:17], s[0:1], 0\ns_load_dwordx8 s[20:27], s[0:1], 16\ns_load_dwordx8 s[28:35], s[0:1], 48\ns_load_dwordx2 s[18:19], s[0:1], 8\ns_load_dwordx2 s[66:67], s[0:1], 88")
    A("""v_and_b32 v1, 63, v0              ; lane
    v_lshrrev_b32 v2, 6, v0
    s_nop 0
    v_readfirstlane_b32 s3, v2         ; wave 0..7
    v_lshrrev_b32 v2, 4, v1            ; grp
    v_and_b32 v3, 15, v1               ; sub
    v_and_b32 v4, 31, v1               ; n / m
    v_lshrrev_b32 v5, 5, v1            ; h
    s_and_b32 s70, s3, 3               ; lw
    s_mov_b32 s60, 0xffff0000
    s_mov_b32 s61, 0x3b000000          ; 1/512
    v_mov_b32 v39, 0x3727c5ac          ; eps
    v_mov_b32 v38, 0x3f803f80          ; bf16 (1,1)
    s_cmp_ge_u32 s2, 224
    s_cbranch_scc1 K1_STAGE1""")
    def tail_srds():
        srd(A, 40, 66, WS_SIZE)
        srd(A, 56, 32, 0x1C0000)
        A("s_cmp_lt_u32 s2, 128\ns_cselect_b32 s52, s18, s20\ns_cselect_b32 s53, s19, s21\ns_and_b32 s53, s53, 0xffff\ns_mov_b32 s54, 0x800000\ns_mov_b32 s55, 0x20000")
    vm = VM(A)
    A("""s_and_b32 s4, s2, 7               ; xcd
    s_lshr_b32 s5, s2, 3               ; q 0..27
""" + (MAPA if not ALIGN else MAPB) + """
    s_lshr_b32 s8, s3, 2
    s_lshl_b32 s9, s6, 1
    s_add_u32 s8, s8, s9               ; tb
    s_lshr_b32 s9, s8, 4               ; p
    s_and_b32 s8, s8, 15               ; ib
    s_lshl_b32 s8, s8, 6
    s_add_u32 s8, s8, s9               ; 64ib+p
    s_and_b32 s9, s3, 1
    s_lshl_b32 s9, s9, 5
    s_add_u32 s8, s8, s9               ; + 2*16*(w&1)
    s_lshr_b32 s9, s3, 1
    s_and_b32 s9, s9, 1                ; half
    s_cmp_eq_u32 s9, 0
    s_cselect_b64 s[64:65], -1, 0
    v_lshlrev_b32 v6, 1, v2
    v_add_u32 v6, s8, v6
    v_mov_b32 v17, 1024""")
    for rho in range(4):
        A(f"""v_add_u32 v7, {8*rho}, v6          ; t
        v_sub_u32 v16, 2048, v7
        v_cmp_eq_u32 vcc, 0, v7
        s_nop 1
        v_cndmask_b32 v16, v16, v17, vcc
        v_cndmask_b32 v7, v16, v7, s[64:65]
        v_lshlrev_b32 v7, 10, v7
        v_lshl_add_u32 v{34+rho}, v3, 4, v7""")
    A("s_waitcnt lgkmcnt(0)")
    srd(A, 36, 16, 0x200000)
    for rho in range(4):
        for i in range(4):
            vm.issue(f"x{rho}", f"buffer_load_dwordx4 {vr(RW(rho,i),4)}, v{34+rho}, s[36:39], 0 offen offset:{i*256}")
    srd(A, 44, 28, 0x1C0000)
    srd(A, 48, 30, 0x1C0000)
    def g1_pro():
        A(f"""s_and_b32 s8, s3, 1
    s_cmp_eq_u32 s8, 0
    s_cselect_b32 s92, s44, s48
    s_cselect_b32 s93, s45, s49
    s_mov_b32 s94, 0x1C0000
    s_mov_b32 s95, 0x20000
    v_mul_u32_u24 v6, 3584, v2
    v_lshlrev_b32 v7, 2, v2
    v_xor_b32 v7, v7, v3
    v_lshlrev_b32 v7, 4, v7
    s_lshl_b32 s9, s7, 8
    v_add3_u32 v20, v6, v7, s9
    s_lshr_b32 s9, s3, 1
    s_mul_i32 s63, s9, 57344
    s_lshl_b32 s62, s9, 13
    s_lshl_b32 s8, s8, 12
    s_add_u32 s62, s62, s8
    s_add_u32 s62, s62, {RINGA}""")
        for a4 in range(4):
            A(f"s_add_u32 m0, s62, {a4*1024}\ns_add_u32 s8, s63, {a4*4*3584}")
            vm.issue("dma0", "buffer_load_dwordx4 v20, s[92:95], s8 offen lds")
        A("""s_and_b32 s8, s6, 3
    s_lshl_b32 s8, s8, 2
    s_lshr_b32 s9, s3, 1
    s_add_u32 s8, s8, s9
    s_lshl_b32 s8, s8, 5
    v_lshrrev_b32 v6, 1, v1
    v_add_u32 v6, s8, v6
    v_mul_u32_u24 v6, 3584, v6
    v_and_b32 v7, 1, v1
    v_lshlrev_b32 v7, 7, v7
    s_lshl_b32 s9, s7, 8
    v_add3_u32 v6, v6, v7, s9""")
        vm.issue("pf", "buffer_load_dword v47, v6, s[92:95], 0 offen")
        A(f"""s_mul_i32 s8, s70, {4*3584}
    v_add_u32 v20, s8, v20
    s_lshl_b32 s62, s70, 10
    s_add_u32 s62, s62, {RINGA}
    s_mov_b32 s63, {4*57344}""")
    tail_srds()
    A("""s_lshr_b32 s8, s3, 1
    s_lshl_b32 s8, s8, 15
    s_and_b32 s9, s3, 1
    s_lshl_b32 s9, s9, 8
    s_add_u32 s8, s8, s9
    v_lshrrev_b32 v6, 1, v3
    v_lshlrev_b32 v6, 10, v6
    v_and_b32 v7, 1, v3
    v_lshlrev_b32 v7, 9, v7
    v_add3_u32 v6, v6, v7, s8
    v_and_b32 v7, 7, v3
    v_xor_b32 v16, v2, v7
    v_lshl_add_u32 v16, v16, 4, v6
    v_add_u32 v17, 4, v2
    v_xor_b32 v17, v17, v7
    v_lshl_add_u32 v17, v17, 4, v6""")
    stamp(A, 1)
    if PRIO: A("s_cmp_lt_u32 s3, 4\ns_cbranch_scc1 G1_NP\ns_setprio 2\nG1_NP:")
    for pair in ((0,1),(2,3)):
        ln_stats(A, vm, pair)
        for rho in pair:
            for i in range(4):
                for d in range(4):
                    u = U(rho,i,d)
                    A(f"v_pk_fma_f32 {vr(u,2)}, {vr(u,2)}, {vr(40+2*rho,2)}, {vr(48+2*rho,2)} op_sel_hi:[1,0,0]")
                o = RW(rho,i)
                for d in range(4):
                    u = U(rho,i,d)
                    A(f"v_cvt_pk_bf16_f32 v{o+d}, v{u}, v{u+1}")
                A(f"ds_write_b128 v{16+(rho&1)}, {vr(o,4)} offset:{(rho>>1)*128 + i*8192}")
        stamp(A, 2 if pair[0] == 0 else 3)
        if pair[0] == 0: g1_pro()
    vm.wait("dma0")
    A("s_setprio 0")
    A("s_cmp_lt_u32 s3, 4\ns_cbranch_scc1 G1_CONS")
    def g1_dma(n):
        A(f"s_add_u32 m0, s62, {(n%4)*8192}\ns_nop 0")
        vm.issue(f"st{n}", "buffer_load_dwordx4 v20, s[44:47], s63 offen lds")
        A(f"s_add_u32 m0, s62, {(n%4)*8192+4096}\ns_nop 0")
        vm.issue(f"st{n}", "buffer_load_dwordx4 v20, s[48:51], s63 offen lds")
        A("s_add_u32 s63, s63, 57344")
    A("s_waitcnt lgkmcnt(0)")
    for n in range(32):
        if n >= 4: vm.wait(f"st{n}")
        A("s_barrier")
        if n >= 1 and n+3 < 32: g1_dma(n+3)
        if SIDE0:
            if n == SIDE0 - 2: SL = side_job(A, vm, True)
            if SIDE0 <= n < SIDE0 + 8:
                for _ in range(2): vm.issue("side", SL.pop(0))
            if n == SIDE0 + 11:
                assert not SL
                side_store(A, vm, True)
        else:
            if n == 20: SL = side_job(A, vm, True)
            if n >= 28:
                for _ in range(5 if n < 31 else 99):
                    if SL: vm.issue("side", SL.pop(0))
            if n == 31: side_store(A, vm, True)
    A("s_branch K1_FIN")
    A("G1_CONS:")
    if SIDE0: side_prefetch(A)
    A(f"""s_lshr_b32 s8, s3, 1              ; wm
    s_and_b32 s9, s3, 1                ; wn
    v_lshrrev_b32 v8, 2, v3            ; r4
    v_and_b32 v9, 3, v3                ; col4
    v_and_b32 v10, 1, v2               ; q&1
    v_lshlrev_b32 v10, 1, v10
    v_lshrrev_b32 v11, 1, v9
    v_add_u32 v10, v10, v11            ; low2
    v_and_b32 v11, 1, v9
    v_lshlrev_b32 v11, 3, v11
    v_lshlrev_b32 v12, 3, v5
    v_add_u32 v12, v12, v8             ; k = 8h + r4
    v_lshlrev_b32 v12, 8, v12
    v_add_u32 v12, {RINGA}, v12
    v_add_u32 v12, v12, v11
    s_lshl_b32 s10, s8, 1
    v_xor_b32 v13, s10, v8
    v_lshl_add_u32 v13, v13, 2, v10
    v_lshl_add_u32 v6, v13, 4, v12
    s_add_u32 s10, s10, 1
    v_xor_b32 v13, s10, v8
    v_lshl_add_u32 v13, v13, 2, v10
    v_lshl_add_u32 v7, v13, 4, v12
    s_lshl_b32 s10, s9, 16
    v_lshlrev_b32 v12, 9, v5
    v_add_u32 v12, s10, v12""")
    for z in range(4):
        A(f"v_add_u32 v13, {2*z}, v5\nv_xor_b32 v13, v13, v4\nv_lshl_add_u32 v{16+z}, v13, 4, v12")
    def rd(st):
        b = FR + 24*(st & 1)
        L = []
        so = (st % 4)*8192
        for nt in range(2):
            L.append(f"ds_read_b128 {vr(b+16+4*nt,4)}, v{16+(st&3)} offset:{st*1024+nt*32768}")
        for mt in range(2):
            for mat in range(2):
                r = b + 8*mt + 4*mat
                L.append(f"ds_read_b64_tr_b16 {vr(r,2)}, v{6+mt} offset:{so+mat*4096}")
                L.append(f"ds_read_b64_tr_b16 {vr(r+2,2)}, v{6+mt} offset:{so+mat*4096+1024}")
        return L
    def mm(st):
        b = FR + 24*(st & 1)
        L = []
        for mt in range(2):
            for mat in range(2):
                for nt in range(2):
                    a = ACC + 16*(4*mt + 2*nt + mat)
                    c = "0" if st == 0 else vr(a,16)
                    L.append(f"v_mfma_f32_32x32x16_bf16 {vr(a,16)}, {vr(b+8*mt+4*mat,4)}, {vr(b+16+4*nt,4)}, {c}")
        return L
    A("s_waitcnt lgkmcnt(0)")
    stamp(A, 4)
    A("s_barrier\ns_setprio 1")
    stamp(A, 5)
    consumer(A, 32, rd, mm, lambda st: st <= 29)
    stamp(A, 6)
    A("s_setprio 0\ns_nop 7\ns_nop 7")
    A(f"""s_lshl_b32 s10, s6, 2
    s_lshl_b32 s11, s9, 1
    s_add_u32 s10, s10, s11
    s_mul_i32 s10, s10, 112
    s_lshl_b32 s11, s7, 3
    s_add_u32 s10, s10, s11
    s_lshl_b32 s11, s8, 2
    s_add_u32 s10, s10, s11
    s_lshl_b32 s10, s10, 10
    s_add_u32 s10, s10, {HF}
    s_add_u32 s11, s10, {112*1024}
    v_lshlrev_b32 v8, 4, v1""")
    for nt in range(2):
        for mt in range(2):
            g = ACC + 16*(4*mt+2*nt); u = g + 16
            for r in range(16): A(f"v_max_f32 v{g+r}, 0, v{g+r}")
            for r in range(0,16,2): A(f"v_pk_mul_f32 {vr(g+r,2)}, {vr(g+r,2)}, {vr(u+r,2)}")
            for r in range(8): A(f"v_cvt_pk_bf16_f32 v{u+r}, v{g+2*r}, v{g+2*r+1}")
            for uu in range(2):
                A(f"buffer_store_dwordx4 {vr(u+4*uu,4)}, v8, s[40:43], s{10+nt} offen offset:{mt*2048+uu*1024}")
    A("s_branch K1_FIN")
    A("K1_STAGE1:")
    vm = VM(A)
    A("""s_sub_u32 s4, s2, 224
    s_and_b32 s5, s4, 1
    s_lshr_b32 s6, s4, 1               ; sb
    s_lshl_b32 s8, s6, 5
    s_lshl_b32 s9, s3, 2
    s_add_u32 s8, s8, s9
    v_add_u32 v6, s8, v2               ; s'
    v_cmp_eq_u32 vcc, 0, v6
    v_sub_u32 v7, 2048, v6
    v_mov_b32 v8, 512
    v_cndmask_b32 v7, v7, v8, vcc      ; r2
    v_sub_u32 v8, 1024, v6             ; r3
    v_add_u32 v9, 1024, v6
    v_mov_b32 v10, 1536
    v_cndmask_b32 v9, v9, v10, vcc     ; r4
    v_lshlrev_b32 v10, 4, v3
    v_lshl_add_u32 v34, v6, 10, v10
    v_lshl_add_u32 v35, v7, 10, v10
    v_lshl_add_u32 v36, v8, 10, v10
    v_lshl_add_u32 v37, v9, 10, v10
    s_mov_b64 s[68:69], vcc            ; s'==0 lanes
    s_waitcnt lgkmcnt(0)""")
    srd(A, 36, 16, 0x200000)
    for rho in range(4):
        for i in range(4):
            vm.issue(f"x{rho}", f"buffer_load_dwordx4 {vr(RW(rho,i),4)}, v{34+rho}, s[36:39], 0 offen offset:{i*256}")
    def s1_pro():
        A(f"""s_cmp_eq_u32 s5, 0
    s_cselect_b32 s44, s22, s24
    s_cselect_b32 s45, s23, s25
    s_cselect_b64 s[64:65], -1, 0      ; cos
    s_and_b32 s45, s45, 0xffff
    s_mov_b32 s46, 0x80000
    s_mov_b32 s47, 0x20000
    v_lshrrev_b32 v6, 2, v1
    v_and_b32 v7, 3, v1
    v_xor_b32 v7, v7, v2
    v_lshlrev_b32 v7, 4, v7            ; c*16
    v_lshl_add_u32 v21, v6, 10, v7
    v_mov_b32 v8, 256
    v_cmp_eq_u32 vcc, 0, v6
    s_and_b64 vcc, vcc, s[64:65]
    s_nop 1
    v_cndmask_b32 v8, v6, v8, vcc
    v_lshl_add_u32 v20, v8, 10, v7
    s_and_b32 s8, s3, 1
    s_cmp_eq_u32 s8, 0
    s_cselect_b64 s[64:65], -1, 0
    s_nop 0
    v_cndmask_b32 v22, v21, v20, s[64:65]
    s_lshr_b32 s9, s3, 1
    s_lshl_b32 s63, s9, 6
    s_lshl_b32 s10, s8, 17
    s_add_u32 s63, s63, s10
    s_lshl_b32 s62, s9, 14
    s_lshl_b32 s10, s8, 13
    s_add_u32 s62, s62, s10
    s_add_u32 s62, s62, {RINGB}""")
        for a8 in range(8):
            A(f"s_add_u32 m0, s62, {a8*1024}\ns_add_u32 s8, s63, {a8*16384}")
            vm.issue("dma0", f"buffer_load_dwordx4 v{22 if a8 == 0 else 21}, s[44:47], s8 offen lds")
        A("""s_lshr_b32 s8, s4, 3
    s_and_b32 s8, s8, 3
    s_lshl_b32 s8, s8, 3
    s_add_u32 s8, s8, s3
    s_lshl_b32 s8, s8, 3
    v_lshrrev_b32 v6, 3, v1
    v_add_u32 v6, s8, v6
    v_and_b32 v7, 7, v1
    v_lshlrev_b32 v7, 7, v7
    v_lshl_add_u32 v6, v6, 10, v7""")
        vm.issue("pf", "buffer_load_dword v47, v6, s[44:47], 0 offen")
        A(f"""s_cmp_eq_u32 s70, 0
    s_cselect_b64 s[64:65], -1, 0
    s_lshl_b32 s8, s70, 16
    v_add_u32 v21, s8, v21
    v_cndmask_b32 v20, v21, v20, s[64:65]
    v_add_u32 v22, {32*1024}, v21
    v_add_u32 v23, {48*1024}, v21
    v_add_u32 v21, {16*1024}, v21
    s_lshl_b32 s62, s70, 12
    s_add_u32 s62, s62, {RINGB}
    s_mov_b32 s63, {4*64}""")
    tail_srds()
    stamp(A, 1)
    ln_stats(A, vm, (0,1))
    s1_pro()
    stamp(A, 2)
    ln_stats(A, vm, (2,3))
    stamp(A, 3)
    A("""s_cmp_eq_u32 s5, 0
    s_cselect_b32 s8, 0x3f800000, 0xbf800000     ; sigma
    s_cselect_b32 s9, 0x3f800000, 0              ; w1,w3 at s'=0
    s_cselect_b32 s10, 0, 0x3f800000             ; w2 at s'=0
    s_cselect_b32 s11, 0, 0xbf800000             ; w4 at s'=0
    v_mov_b32 v6, 1.0
    v_mov_b32 v7, s9
    v_cndmask_b32 v6, v6, v7, s[68:69]
    v_mul_f32 v8, v6, v40
    v_mul_f32 v12, v6, v44
    v_mov_b32 v6, s8
    v_mov_b32 v7, s10
    v_cndmask_b32 v7, v6, v7, s[68:69]
    v_mul_f32 v10, v7, v42
    v_mov_b32 v7, s11
    v_cndmask_b32 v7, v6, v7, s[68:69]
    v_mul_f32 v14, v7, v46
    v_mul_f32 v56, v8, v49
    v_fma_f32 v56, v10, v51, v56       ; cu = -(m1 s1 + m2 s2)
    v_mul_f32 v58, v12, v53
    v_fma_f32 v58, v14, v55, v58       ; cv
    v_add_f32 v60, v50, v54            ; extra-row constant
    s_lshl_b32 s8, s3, 2
    v_add_u32 v6, s8, v2               ; m
    v_and_b32 v7, 7, v3
    v_xor_b32 v6, v6, v7
    v_lshlrev_b32 v6, 4, v6
    v_lshrrev_b32 v7, 1, v3
    v_lshl_add_u32 v6, v7, 10, v6
    v_and_b32 v7, 1, v3
    v_lshl_add_u32 v16, v7, 9, v6      ; LDS write addr
    v_lshlrev_b32 v17, 4, v3
    v_add_u32 v17, %d, v17             ; extra row addr""" % XTRA)
    for i in range(4):
        o = RW(0,i)
        for d in range(4):
            u2, u4 = U(1,i,d), U(3,i,d)
            A(f"v_pk_fma_f32 v[18:19], {vr(u2,2)}, v[42:43], v[60:61] op_sel_hi:[1,0,0]")
            A(f"v_pk_fma_f32 v[18:19], {vr(u4,2)}, v[46:47], v[18:19] op_sel_hi:[1,0,1]")
            A(f"v_cvt_pk_bf16_f32 v{o+d}, v18, v19")
        A("s_mov_b64 exec, s[90:91]") if False else None
    A("s_cmp_eq_u32 s3, 0\ns_cbranch_scc0 S1_NOX")
    A("s_mov_b64 s[90:91], exec\ns_mov_b32 exec_lo, 0xffff\ns_mov_b32 exec_hi, 0")
    for i in range(4):
        A(f"ds_write_b128 v17, {vr(RW(0,i),4)} offset:{i*256}")
    A("s_mov_b64 exec, s[90:91]\nS1_NOX:")
    for i in range(4):
        o1, o2 = RW(1,i), RW(2,i)
        for d in range(4):
            u1,u2,u3,u4 = (U(r,i,d) for r in range(4))
            A(f"v_pk_fma_f32 {vr(u1,2)}, {vr(u1,2)}, v[8:9], v[56:57] op_sel_hi:[1,0,0]")
            A(f"v_pk_fma_f32 {vr(u3,2)}, {vr(u3,2)}, v[12:13], v[58:59] op_sel_hi:[1,0,0]")
            A(f"v_pk_fma_f32 {vr(u1,2)}, {vr(u2,2)}, v[10:11], {vr(u1,2)} op_sel_hi:[1,0,1]")
            A(f"v_pk_fma_f32 {vr(u3,2)}, {vr(u4,2)}, v[14:15], {vr(u3,2)} op_sel_hi:[1,0,1]")
            A(f"v_pk_add_f32 {vr(u2,2)}, {vr(u1,2)}, {vr(u3,2)}")
            A(f"v_pk_add_f32 {vr(u4,2)}, {vr(u1,2)}, {vr(u3,2)} neg_lo:[0,1] neg_hi:[0,1]")
            A(f"v_cvt_pk_bf16_f32 v{o1+d}, v{u2}, v{u2+1}")
            A(f"v_cvt_pk_bf16_f32 v{o2+d}, v{u4}, v{u4+1}")
        A(f"ds_write_b128 v16, {vr(o1,4)} offset:{i*8192}")
        A(f"ds_write_b128 v16, {vr(o2,4)} offset:{i*8192+32768}")
    vm.wait("dma0")
    A("s_cmp_lt_u32 s3, 4\ns_cbranch_scc1 S1_CONS")
    def s1_dma(n):
        for a in range(4):
            A(f"s_add_u32 m0, s62, {(n%4)*16384+a*1024}\ns_nop 0")
            vm.issue(f"st{n}", f"buffer_load_dwordx4 v{20+a}, s[44:47], s63 offen lds")
        A("s_add_u32 s63, s63, 64")
    A("s_waitcnt lgkmcnt(0)")
    for n in range(16):
        if n >= 4: vm.wait(f"st{n}")
        A("s_barrier")
        if n >= 1 and n+3 < 16: s1_dma(n+3)
        if n == 8 and USE_CS: SL = side_job(A, vm, False)
        if n == 13:
            while SL: vm.issue("side", SL.pop(0))
        if n == 15 and USE_CS: side_store(A, vm, False)
    A("s_branch K1_FIN")
    A("S1_CONS:")
    A(f"""s_lshl_b32 s8, s3, 6
    v_add_u32 v8, s8, v4
    v_lshlrev_b32 v8, 6, v8
    v_add_u32 v8, {RINGB}, v8
    v_lshrrev_b32 v9, 2, v4
    v_and_b32 v9, 3, v9
    v_xor_b32 v9, v9, v5
    v_lshl_add_u32 v6, v9, 4, v8
    v_xor_b32 v9, 2, v9
    v_lshl_add_u32 v7, v9, 4, v8
    v_lshlrev_b32 v12, 9, v5
    v_lshlrev_b32 v20, 4, v5
    v_add_u32 v20, {XTRA}, v20""")
    for z in range(4):
        A(f"v_add_u32 v13, {2*z}, v5\nv_xor_b32 v13, v13, v4\nv_lshl_add_u32 v{16+z}, v13, 4, v12")
    def rd1(st):
        b = FR + 24*(st & 1)
        n, uu = st >> 1, st & 1
        L = [f"ds_read_b128 {vr(b,4)}, v{16+(st&3)} offset:{st*1024}",
             f"ds_read_b128 {vr(b+12,4)}, v{6+uu} offset:{(n%4)*16384}",
             f"ds_read_b128 {vr(b+4,4)}, v{16+(st&3)} offset:{st*1024+32768}",
             f"ds_read_b128 {vr(b+16,4)}, v{6+uu} offset:{(n%4)*16384+2048}",
             f"ds_read_b128 {vr(b+8,4)}, v20 offset:{st*32}"]
        return L
    def mm1(st):
        b = FR + 24*(st & 1)
        L = []
        for mt in range(3):
            for nt in range(2):
                a = ACC + 16*(2*mt+nt)
                c = "0" if st == 0 else vr(a,16)
                L.append(f"v_mfma_f32_32x32x16_bf16 {vr(a,16)}, {vr(b+4*mt,4)}, {vr(b+12+4*nt,4)}, {c}")
        return L
    A("s_waitcnt lgkmcnt(0)")
    stamp(A, 4)
    A("s_barrier")
    stamp(A, 5)
    consumer(A, 32, rd1, mm1, lambda st: st >= 0 and (st & 1) == 0 and st//2+1 <= 15)
    stamp(A, 6)
    A("s_nop 7\ns_nop 7")
    A(f"""s_lshl_b32 s8, s5, 1
    s_add_u32 s9, s8, s5
    s_sub_u32 s10, 1, s5
    s_add_u32 s10, s10, s8
    s_lshl_b32 s11, s3, 1              ; j0
    s_lshl_b32 s9, s9, 3
    s_add_u32 s9, s9, s11
    s_lshl_b32 s9, s9, 5
    s_lshl_b32 s10, s10, 3
    s_add_u32 s10, s10, s11
    s_lshl_b32 s10, s10, 5
    s_lshl_b32 s11, s6, 1
    s_add_u32 s9, s9, s11
    s_add_u32 s10, s10, s11
    s_lshl_b32 s9, s9, 10
    s_lshl_b32 s10, s10, 10
    s_add_u32 s9, s9, {AB}
    s_add_u32 s10, s10, {AB}
    s_add_u32 s12, s9, 32768
    s_add_u32 s13, s10, 32768
    v_lshlrev_b32 v8, 4, v1""")
    for mt in range(2):
        for nt in range(2):
            a = ACC + 16*(2*mt+nt)
            o = FR + 8*(2*mt+nt)
            for r in range(8): A(f"v_cvt_pk_bf16_f32 v{o+r}, v{a+2*r}, v{a+2*r+1}")
            so = [["s9","s12"],["s10","s13"]][mt][nt]
            for uu in range(2):
                A(f"buffer_store_dwordx4 {vr(o+4*uu,4)}, v8, s[40:43], {so} offen offset:{uu*1024}")
    A(f"""s_cmp_eq_u32 s4, 0
    s_cbranch_scc0 K1_FIN
    s_lshl_b32 s8, s3, 8
    s_add_u32 s8, s8, {A512}
    v_lshlrev_b32 v8, 2, v4
    s_mov_b64 s[68:69], exec
    s_mov_b32 exec_lo, -1
    s_mov_b32 exec_hi, 0
    buffer_store_dword v{ACC+64}, v8, s[40:43], s8 offen
    buffer_store_dword v{ACC+80}, v8, s[40:43], s8 offen offset:128
    s_mov_b64 exec, s[68:69]""")
    A("K1_FIN:")
    if INSTR:
        A("s_waitcnt vmcnt(0)")
        stamp(A, 7)
        stamp_dump(A, (0, 100, 224, 255), 8) if INSTR != 3 else stamp_dump(A, (0,1,31,100,200,223,224,255), 8, waves=(0,))
    A("K1_END:\ns_endpgm")
    return A.text()
```

```python
from common import *
import os

DEPTH = int(os.environ.get('DEPTH', '8'))
DD = 176
NSTEP = 36
RING0 = 40
XV = 20
USE_CS = int(os.environ.get('USE_CS', '0'))
GEN0 = int(os.environ.get('GEN0', '3'))
AF = 96
def gen_k2(name):
    A = Asm()
    A(f".p2align 8\n.globl {name}\n.type {name},@function\n{name}:")
    A("s_cmp_ge_u32 s2, 256\ns_cbranch_scc1 K2_END")
    for i in range(8): stamp(A, i)
    A("s_load_dwordx2 s[16:17], s[0:1], 0\ns_load_dwordx2 s[18:19], s[0:1], 72\ns_load_dwordx2 s[20:21], s[0:1], 88")
    A("v_and_b32 v1, 63, v0\nv_lshrrev_b32 v2, 6, v0\ns_nop 0\nv_readfirstlane_b32 s3, v2")
    A("""s_and_b32 s4, s2, 7
    s_lshr_b32 s5, s2, 3
    s_and_b32 s6, s4, 1            ; p
    s_lshr_b32 s7, s4, 1
    s_lshl_b32 s7, s7, 2
    s_and_b32 s8, s5, 3
    s_add_u32 s7, s7, s8           ; ib
    s_lshr_b32 s8, s5, 2           ; j
    s_lshl_b32 s9, s6, 4
    s_add_u32 s9, s9, s7           ; tb
    s_lshr_b32 s10, s3, 1
    s_and_b32 s11, s3, 1           ; nt = w&1
    s_waitcnt lgkmcnt(0)""")
    srd(A, 24, 16, 0x200000)
    srd(A, 28, 18, 0x200000)
    srd(A, 32, 20, WS_SIZE)
    A(f"""s_mul_i32 s36, s9, {2*112*1024}
    s_mul_i32 s12, s3, {28*1024}
    s_add_u32 s36, s36, s12
    s_add_u32 s36, s36, {HF}
    s_add_u32 s37, s36, {112*1024}
    s_mul_i32 s38, s8, {2*112*1024}
    s_add_u32 s38, s38, s12
    s_add_u32 s38, s38, {WDT}
    s_add_u32 s39, s38, {112*1024}""")
    A(f"""s_lshl_b32 s56, s10, 5
    s_add_u32 s56, s56, s9
    s_lshl_b32 s56, s56, 15
    s_lshl_b32 s12, s11, 14
    s_add_u32 s56, s56, s12
    s_add_u32 s56, s56, {CS}
    s_lshl_b32 s57, s10, 1
    s_add_u32 s57, s57, s6
    s_lshl_b32 s57, s57, 3
    s_add_u32 s57, s57, s8
    s_lshl_b32 s57, s57, 15
    s_add_u32 s57, s57, s12
    s_add_u32 s57, s57, {AB}""")
    A("v_lshlrev_b32 v2, 4, v1          ; lane*16")
    def LATE():
        A("""v_and_b32 v3, 31, v1
    v_lshrrev_b32 v4, 5, v1
    s_lshl_b32 s12, s8, 5
    v_add_u32 v5, s12, v3              ; e = 32j+n
    v_mov_b32 v6, 256
    v_cmp_eq_u32 vcc, 0, v5
    s_nop 1
    v_cndmask_b32 v6, v5, v6, vcc
    v_sub_u32 v7, 512, v5
    v_and_b32 v7, 511, v7
    s_cmp_eq_u32 s11, 0
    s_cselect_b64 s[58:59], -1, 0
    s_nop 0
    v_cndmask_b32 v6, v7, v6, s[58:59]  ; col
    v_lshlrev_b32 v6, 1, v6
    v_mov_b32 v8, 1.0
    v_mov_b32 v9, 0
    s_andn2_b64 s[60:61], vcc, s[58:59]
    s_nop 1
    v_cndmask_b32 v8, v8, v9, s[60:61]
    s_lshl_b32 s12, s7, 6
    s_add_u32 s12, s12, s6
    v_lshlrev_b32 v9, 3, v4
    v_add_u32 v9, s12, v9
    v_sub_u32 v10, 1994, v9
    s_cmp_eq_u32 s10, 0
    s_cselect_b64 s[58:59], -1, 0
    s_nop 1
    v_cndmask_b32 v9, v10, v9, s[58:59]
    v_lshlrev_b32 v9, 10, v9
    v_add_u32 v9, v9, v6
    s_cmp_eq_u32 s9, 0
    s_cselect_b32 s12, s10, 0
    s_lshl_b32 s13, s12, 20
    v_mov_b32 v10, s13
    v_mov_b32 v11, 0
    v_cmp_eq_u32 vcc, 0, v4
    s_nop 1
    v_cndmask_b32 v10, v11, v10, vcc
    v_sub_u32 v10, v9, v10
    v_mov_b32 v12, s12
    v_cndmask_b32 v12, v11, v12, vcc
    """)
        for r in range(16):
            off = 16*(r>>2) + 2*(r&3)
            A(f"s_mov_b32 s12, {off*1024}\ns_mov_b32 s13, {(54-off)*1024}\ns_cmp_eq_u32 s10, 0\ns_cselect_b32 s{40+r}, s12, s13")

    vm = VM(A)
    POS = {}
    def slot(st): return RING0 + 16*(POS[st] % DEPTH)
    def loads(st):
        b = slot(st); tg = f"s{st}"
        if st < 28:
            o = (st & 3)*1024
            for q, s in enumerate((36, 38, 37, 39)):
                r = (0, 8, 4, 12)[q]
                vm.issue(tg, f"buffer_load_dwordx4 {vr(b+r,4)}, v2, s[32:35], s{s} offen offset:{o}")
            if (st & 3) == 3:
                for s in (36, 37, 38, 39): A(f"s_add_u32 s{s}, s{s}, 4096")
        else:
            u = st - 28
            o = (u & 1)*2048
            if USE_CS: vm.issue(tg, f"buffer_load_dwordx4 {vr(b,4)}, v2, s[32:35], s56 offen offset:{o}")
            vm.issue(tg, f"buffer_load_dwordx4 {vr(b+4,4)}, v2, s[32:35], s57 offen offset:{o}")
            if USE_CS: vm.issue(tg, f"buffer_load_dwordx4 {vr(b+8,4)}, v2, s[32:35], s56 offen offset:{o+1024}")
            vm.issue(tg, f"buffer_load_dwordx4 {vr(b+12,4)}, v2, s[32:35], s57 offen offset:{o+1024}")
            if u & 1: A("s_add_u32 s56, s56, 4096\ns_add_u32 s57, s57, 4096")
    def mfmas(st):
        b = slot(st)
        if st < 28:
            for mt in range(2):
                for nt in range(2):
                    a = 16*(2*mt+nt)
                    c = "0" if st == 0 else ar(a,16)
                    A(f"v_mfma_f32_32x32x16_bf16 {ar(a,16)}, {vr(b+4*mt,4)}, {vr(b+8+4*nt,4)}, {c}")
        else:
            f = st == 28
            u = st - 28
            A0 = vr(b,4) if USE_CS else ar(AF+8*u,4)
            A1 = vr(b+8,4) if USE_CS else ar(AF+8*u+4,4)
            A(f"v_mfma_f32_32x32x16_bf16 a[64:79], {A0}, {vr(b+4,4)}, {'0' if f else 'a[64:79]'}")
            A(f"v_mfma_f32_32x32x16_bf16 a[80:95], v[16:19], {vr(b+4,4)}, {'0' if f else 'a[80:95]'}")
            A(f"v_mfma_f32_32x32x16_bf16 a[64:79], {A1}, {vr(b+12,4)}, a[64:79]")
            A(f"v_mfma_f32_32x32x16_bf16 a[80:95], v[16:19], {vr(b+12,4)}, a[80:95]")
    def late_setup():
        LATE()
        A(f"""s_lshl_b32 s12, s8, 7
        s_add_u32 s12, s12, {A512}
        v_lshlrev_b32 v11, 2, v3""")
        vm.issue("x", "buffer_load_dword v13, v11, s[32:35], s12 offen")
        for r in range(16):
            vm.issue("x", f"buffer_load_ushort v{XV+r}, v{10 if r == 0 else 9}, s[24:27], s{40+r} offen")
        A("""v_mov_b32 v14, 0xBF803F80
        v_mov_b32 v15, 0
        v_cmp_eq_u32 vcc, 0, v3
        s_nop 1
        v_cndmask_b32 v16, v15, v14, vcc
        v_cndmask_b32 v17, v15, v14, vcc
        v_cndmask_b32 v18, v15, v14, vcc
        v_cndmask_b32 v19, v15, v14, vcc""")
        A("s_lshl_b32 s12, s3, 14\nv_add_u32 v11, s12, v2          ; w*16K + lane*16")
        A("s_lshl_b32 s12, s3, 12\ns_add_u32 s13, s12, 65536\nv_add_u32 v14, s13, v2\nv_add_u32 v38, s12, v2")
        A("s_lshl_b32 s12, s3, 8\ns_add_u32 s12, s12, 81920\nv_lshlrev_b32 v15, 2, v1\nv_add_u32 v15, s12, v15")
    def gen_setup():
        A("""s_lshl_b32 s12, s7, 6
        s_add_u32 s12, s12, s6
        v_lshlrev_b32 v245, 1, v3
        v_add_u32 v245, s12, v245
        v_cvt_f32_u32 v245, v245
        v_mul_f32 v245, 0xba000000, v245
        s_lshl_b32 s12, s11, 8
        v_lshlrev_b32 v244, 2, v4
        v_add_u32 v244, s12, v244
        v_cvt_f32_u32 v244, v244
        s_cmp_eq_u32 s10, 0
        s_cselect_b32 s12, 0x3e800000, 0
        v_mov_b32 v246, s12
        v_fma_f32 v244, v245, v244, v246
        s_andn2_b32 s12, s10, s11
        s_cmp_eq_u32 s12, 1
        s_cselect_b32 s12, 0x44000000, 0
        v_mov_b32 v246, s12
        v_mov_b32 v247, 0
        v_cmp_eq_u32 vcc, 0, v4
        s_nop 1
        v_cndmask_b32 v246, v247, v246, vcc
        v_fma_f32 v246, v245, v246, v244""")
    def gen_frag(j):
        import struct
        T = 168
        for e in range(8):
            K = 16*j + 8*(e >> 2) + (e & 3)
            if K == 0:
                A(f"v_mov_b32 v{T}, v246")
            else:
                A(f"v_fmamk_f32 v{T+e}, v245, 0x{struct.unpack('<I', struct.pack('<f', float(K)))[0]:08x}, v244")
        for e in range(8): A(f"v_sin_f32 v{T+e}, v{T+e}")
        for d in range(4): A(f"v_cvt_pk_bf16_f32 v{240+d}, v{T+2*d}, v{T+2*d+1}")
        for d in range(4): A(f"v_accvgpr_write_b32 a{AF+4*j+d}, v{240+d}")
    assert not USE_CS
    DPOS = int(os.environ.get('DPOS', '12'))
    SEQ = list(range(DPOS)) + list(range(28, 36)) + list(range(DPOS, 28))
    POS.update({st: i for i, st in enumerate(SEQ)})
    for i in range(DEPTH): loads(SEQ[i])
    stamp(A, 1)
    Y = 240
    def y_write():
        A("s_nop 7\ns_nop 7")
        for g in range(4):
            A(f"ds_write_b128 v14, {ar(64+4*g,4)} offset:{g*1024}")
        A("ds_write_b32 v15, a80")
        A("v_add_u32 v14, 65536, v2\nv_lshlrev_b32 v15, 2, v3\nv_add_u32 v15, 81920, v15")
    def y_read():
        A("s_waitcnt lgkmcnt(0)\ns_barrier")
        for src in range(4):
            for g in range(4):
                A(f"ds_read_b128 {vr(DD+16*src+4*g,4)}, v14 offset:{src*4096+g*1024}")
        A(f"ds_read_b32 v36, v15\nds_read_b32 v37, v15 offset:256")
    def y_sum():
        vm.wait("x")
        A("""s_cmp_eq_u32 s10, s11
        s_cselect_b32 s12, 0xbf800000, 0x3f800000
        s_cmp_eq_u32 s6, 0
        s_cselect_b32 s13, 0x3f800000, 0
        v_mul_f32 v13, s13, v13
        s_waitcnt lgkmcnt(0)""")
        P = DD
        for r in range(0,16,2):
            A(f"v_pk_add_f32 {vr(P+r,2)}, {vr(P+r,2)}, {vr(P+16+r,2)}\nv_pk_add_f32 {vr(P+32+r,2)}, {vr(P+32+r,2)}, {vr(P+48+r,2)}")
        for r in range(16):
            op = "v_add_f32" if (r & 1) == 0 else "v_sub_f32"
            A(f"{op} v{P+r}, v{P+r}, v13")
        for r in range(16):
            A(f"v_fma_f32 v{P+r}, s12, v{P+32+r}, v{P+r}")
        A(f"""v_add_f32 v36, v36, v37
        v_add_f32 v36, v36, v13
        v_cmp_ne_u32 vcc, 0, v12
        s_nop 1
        v_cndmask_b32 v{P}, v{P}, v36, vcc""")
        for r in range(16): A(f"v_mul_f32 v{Y+r}, v{P+r}, v8\nv_lshlrev_b32 v{XV+r}, 16, v{XV+r}")
    for i in range(NSTEP):
        st = SEQ[i]
        if i == 1: stamp(A, 2)
        if i == DPOS: stamp(A, 3)
        if i == DPOS + 8: stamp(A, 4)
        vm.wait(f"s{st}")
        mfmas(st)
        if i + DEPTH < NSTEP: loads(SEQ[i+DEPTH])
        if i == 2:
            late_setup()
            gen_setup()
        if GEN0 <= i < GEN0 + 16: gen_frag(i - GEN0)
        if i == DPOS + 8: y_write()
        if i == DPOS + 10: y_read()
        if i == DPOS + 12: y_sum()
    assert GEN0 + 1 < DPOS and GEN0 + 15 < DPOS + 7 and DPOS + 12 < NSTEP
    stamp(A, 5)
    A("s_nop 7\ns_nop 7")
    for qd in range(4):
        for g in range(4):
            A(f"ds_write_b128 v11, {ar(16*qd+4*g,4)} offset:{(qd*4+g)*1024}")
    A("s_waitcnt lgkmcnt(0)\ns_barrier")
    for g in range(4):
        for src in range(4):
            A(f"ds_read_b128 {vr(DD+16*src+4*g,4)}, v38 offset:{src*16384+g*1024}")
    D = DD; T = RING0
    for g in range(4):
        A(f"s_waitcnt lgkmcnt({12-4*g})")
        rs = range(4*g, 4*g+4)
        for r in (4*g, 4*g+2):
            A(f"v_pk_add_f32 {vr(D+r,2)}, {vr(D+r,2)}, {vr(D+16+r,2)}\nv_pk_add_f32 {vr(D+32+r,2)}, {vr(D+32+r,2)}, {vr(D+48+r,2)}")
        for r in (4*g, 4*g+2):
            A(f"v_pk_add_f32 {vr(D+r,2)}, {vr(D+r,2)}, {vr(D+32+r,2)}")
        A("s_nop 0")
        for r in rs: A(f"v_mul_f32 v{T+r}, 0xbfb8aa3b, v{D+r}")
        for r in rs: A(f"v_exp_f32 v{T+r}, v{T+r}")
        for r in rs: A(f"v_mul_f32 v{D+r}, v{D+r}, v{Y+r}")
        for r in rs: A(f"v_add_f32 v{T+r}, 1.0, v{T+r}")
        for r in rs: A(f"v_rcp_f32 v{T+r}, v{T+r}")
        if g == 3: stamp(A, 6)
        A("s_nop 0")
        for r in rs: A(f"v_fma_f32 v{D+r}, v{D+r}, v{T+r}, v{XV+r}")
        for r in rs: A(f"v_cvt_pk_bf16_f32 v{D+r}, v{D+r}, v{D+r}")
        for r in rs: A(f"buffer_store_short v{D+r}, v{10 if r == 0 else 9}, s[28:31], s{40+r} offen")
    if INSTR:
        A("s_waitcnt vmcnt(0)")
        if INSTR in (1,3): stamp(A, 7)
        stamp_dump(A, (0, 77, 130, 255), 8, waves=(0,3)) if INSTR != 3 else stamp_dump(A, (0,1,31,77,130,200,254,255), 8, waves=(0,))
    A("K2_END:\ns_endpgm")
    assert RING0 + 16*DEPTH <= DD
    return A.text(), 256
```

```python
from common import *
import os

DEPTH = int(os.environ.get('DEPTH', '8'))
DD = 176
NSTEP = 36
RING0 = 40
XV = 20
USE_CS = int(os.environ.get('USE_CS', '0'))
GEN0 = int(os.environ.get('GEN0', '3'))
AF = 96
def gen_k2(name):
    A = Asm()
    A(f".p2align 8\n.globl {name}\n.type {name},@function\n{name}:")
    A("s_cmp_ge_u32 s2, 256\ns_cbranch_scc1 K2_END")
    for i in range(8): stamp(A, i)
    A("s_load_dwordx2 s[16:17], s[0:1], 0\ns_load_dwordx2 s[18:19], s[0:1], 72\ns_load_dwordx2 s[20:21], s[0:1], 88")
    A("v_and_b32 v1, 63, v0\nv_lshrrev_b32 v2, 6, v0\ns_nop 0\nv_readfirstlane_b32 s3, v2")
    A("""s_and_b32 s4, s2, 7
    s_lshr_b32 s5, s2, 3
    s_and_b32 s6, s4, 1            ; p
    s_lshr_b32 s7, s4, 1
    s_lshl_b32 s7, s7, 2
    s_and_b32 s8, s5, 3
    s_add_u32 s7, s7, s8           ; ib
    s_lshr_b32 s8, s5, 2           ; j
    s_lshl_b32 s9, s6, 4
    s_add_u32 s9, s9, s7           ; tb
    s_lshr_b32 s10, s3, 1
    s_and_b32 s11, s3, 1           ; nt = w&1
    s_waitcnt lgkmcnt(0)""")
    srd(A, 24, 16, 0x200000)
    srd(A, 28, 18, 0x200000)
    srd(A, 32, 20, WS_SIZE)
    A(f"""s_mul_i32 s36, s9, {2*112*1024}
    s_mul_i32 s12, s3, {28*1024}
    s_add_u32 s36, s36, s12
    s_add_u32 s36, s36, {HF}
    s_add_u32 s37, s36, {112*1024}
    s_mul_i32 s38, s8, {2*112*1024}
    s_add_u32 s38, s38, s12
    s_add_u32 s38, s38, {WDT}
    s_add_u32 s39, s38, {112*1024}""")
    A(f"""s_lshl_b32 s56, s10, 5
    s_add_u32 s56, s56, s9
    s_lshl_b32 s56, s56, 15
    s_lshl_b32 s12, s11, 14
    s_add_u32 s56, s56, s12
    s_add_u32 s56, s56, {CS}
    s_lshl_b32 s57, s10, 1
    s_add_u32 s57, s57, s6
    s_lshl_b32 s57, s57, 3
    s_add_u32 s57, s57, s8
    s_lshl_b32 s57, s57, 15
    s_add_u32 s57, s57, s12
    s_add_u32 s57, s57, {AB}""")
    A("v_lshlrev_b32 v2, 4, v1          ; lane*16")
    def LATE():
        A("""v_and_b32 v3, 31, v1
    v_lshrrev_b32 v4, 5, v1
    s_lshl_b32 s12, s8, 5
    v_add_u32 v5, s12, v3              ; e = 32j+n
    v_mov_b32 v6, 256
    v_cmp_eq_u32 vcc, 0, v5
    s_nop 1
    v_cndmask_b32 v6, v5, v6, vcc
    v_sub_u32 v7, 512, v5
    v_and_b32 v7, 511, v7
    s_cmp_eq_u32 s11, 0
    s_cselect_b64 s[58:59], -1, 0
    s_nop 0
    v_cndmask_b32 v6, v7, v6, s[58:59]  ; col
    v_lshlrev_b32 v6, 1, v6
    v_mov_b32 v8, 1.0
    v_mov_b32 v9, 0
    s_andn2_b64 s[60:61], vcc, s[58:59]
    s_nop 1
    v_cndmask_b32 v8, v8, v9, s[60:61]
    s_lshl_b32 s12, s7, 6
    s_add_u32 s12, s12, s6
    v_lshlrev_b32 v9, 3, v4
    v_add_u32 v9, s12, v9
    v_sub_u32 v10, 1994, v9
    s_cmp_eq_u32 s10, 0
    s_cselect_b64 s[58:59], -1, 0
    s_nop 1
    v_cndmask_b32 v9, v10, v9, s[58:59]
    v_lshlrev_b32 v9, 10, v9
    v_add_u32 v9, v9, v6
    s_cmp_eq_u32 s9, 0
    s_cselect_b32 s12, s10, 0
    s_lshl_b32 s13, s12, 20
    v_mov_b32 v10, s13
    v_mov_b32 v11, 0
    v_cmp_eq_u32 vcc, 0, v4
    s_nop 1
    v_cndmask_b32 v10, v11, v10, vcc
    v_sub_u32 v10, v9, v10
    v_mov_b32 v12, s12
    v_cndmask_b32 v12, v11, v12, vcc
    """)
        for r in range(16):
            off = 16*(r>>2) + 2*(r&3)
            A(f"s_mov_b32 s12, {off*1024}\ns_mov_b32 s13, {(54-off)*1024}\ns_cmp_eq_u32 s10, 0\ns_cselect_b32 s{40+r}, s12, s13")

    vm = VM(A)
    POS = {}
    def slot(st): return RING0 + 16*(POS[st] % DEPTH)
    def loads(st):
        b = slot(st); tg = f"s{st}"
        if st < 28:
            o = (st & 3)*1024
            for q, s in enumerate((36, 38, 37, 39)):
                r = (0, 8, 4, 12)[q]
                vm.issue(tg, f"buffer_load_dwordx4 {vr(b+r,4)}, v2, s[32:35], s{s} offen offset:{o}")
            if (st & 3) == 3:
                for s in (36, 37, 38, 39): A(f"s_add_u32 s{s}, s{s}, 4096")
        else:
            u = st - 28
            o = (u & 1)*2048
            if USE_CS: vm.issue(tg, f"buffer_load_dwordx4 {vr(b,4)}, v2, s[32:35], s56 offen offset:{o}")
            vm.issue(tg, f"buffer_load_dwordx4 {vr(b+4,4)}, v2, s[32:35], s57 offen offset:{o}")
            if USE_CS: vm.issue(tg, f"buffer_load_dwordx4 {vr(b+8,4)}, v2, s[32:35], s56 offen offset:{o+1024}")
            vm.issue(tg, f"buffer_load_dwordx4 {vr(b+12,4)}, v2, s[32:35], s57 offen offset:{o+1024}")
            if u & 1: A("s_add_u32 s56, s56, 4096\ns_add_u32 s57, s57, 4096")
    def mfmas(st):
        b = slot(st)
        if st < 28:
            for mt in range(2):
                for nt in range(2):
                    a = 16*(2*mt+nt)
                    c = "0" if st == 0 else ar(a,16)
                    A(f"v_mfma_f32_32x32x16_bf16 {ar(a,16)}, {vr(b+4*mt,4)}, {vr(b+8+4*nt,4)}, {c}")
        else:
            f = st == 28
            u = st - 28
            A0 = vr(b,4) if USE_CS else ar(AF+8*u,4)
            A1 = vr(b+8,4) if USE_CS else ar(AF+8*u+4,4)
            A(f"v_mfma_f32_32x32x16_bf16 a[64:79], {A0}, {vr(b+4,4)}, {'0' if f else 'a[64:79]'}")
            A(f"v_mfma_f32_32x32x16_bf16 a[80:95], v[16:19], {vr(b+4,4)}, {'0' if f else 'a[80:95]'}")
            A(f"v_mfma_f32_32x32x16_bf16 a[64:79], {A1}, {vr(b+12,4)}, a[64:79]")
            A(f"v_mfma_f32_32x32x16_bf16 a[80:95], v[16:19], {vr(b+12,4)}, a[80:95]")
    def late_setup():
        LATE()
        A(f"""s_lshl_b32 s12, s8, 7
        s_add_u32 s12, s12, {A512}
        v_lshlrev_b32 v11, 2, v3""")
        vm.issue("x", "buffer_load_dword v13, v11, s[32:35], s12 offen")
        for r in range(16):
            vm.issue("x", f"buffer_load_ushort v{XV+r}, v{10 if r == 0 else 9}, s[24:27], s{40+r} offen")
        A("""v_mov_b32 v14, 0xBF803F80
        v_mov_b32 v15, 0
        v_cmp_eq_u32 vcc, 0, v3
        s_nop 1
        v_cndmask_b32 v16, v15, v14, vcc
        v_cndmask_b32 v17, v15, v14, vcc
        v_cndmask_b32 v18, v15, v14, vcc
        v_cndmask_b32 v19, v15, v14, vcc""")
        A("s_lshl_b32 s12, s3, 14\nv_add_u32 v11, s12, v2          ; w*16K + lane*16")
        A("s_lshl_b32 s12, s3, 12\ns_add_u32 s13, s12, 65536\nv_add_u32 v14, s13, v2\nv_add_u32 v38, s12, v2")
        A("s_lshl_b32 s12, s3, 8\ns_add_u32 s12, s12, 81920\nv_lshlrev_b32 v15, 2, v1\nv_add_u32 v15, s12, v15")
    def gen_setup():
        A("""s_lshl_b32 s12, s7, 6
        s_add_u32 s12, s12, s6
        v_lshlrev_b32 v245, 1, v3
        v_add_u32 v245, s12, v245
        v_cvt_f32_u32 v245, v245
        v_mul_f32 v245, 0xba000000, v245
        s_lshl_b32 s12, s11, 8
        v_lshlrev_b32 v244, 2, v4
        v_add_u32 v244, s12, v244
        v_cvt_f32_u32 v244, v244
        s_cmp_eq_u32 s10, 0
        s_cselect_b32 s12, 0x3e800000, 0
        v_mov_b32 v246, s12
        v_fma_f32 v244, v245, v244, v246
        s_andn2_b32 s12, s10, s11
        s_cmp_eq_u32 s12, 1
        s_cselect_b32 s12, 0x44000000, 0
        v_mov_b32 v246, s12
        v_mov_b32 v247, 0
        v_cmp_eq_u32 vcc, 0, v4
        s_nop 1
        v_cndmask_b32 v246, v247, v246, vcc
        v_fma_f32 v246, v245, v246, v244""")
    def gen_frag(j):
        import struct
        T = 168
        for e in range(8):
            K = 16*j + 8*(e >> 2) + (e & 3)
            if K == 0:
                A(f"v_mov_b32 v{T}, v246")
            else:
                A(f"v_fmamk_f32 v{T+e}, v245, 0x{struct.unpack('<I', struct.pack('<f', float(K)))[0]:08x}, v244")
        for e in range(8): A(f"v_sin_f32 v{T+e}, v{T+e}")
        for d in range(4): A(f"v_cvt_pk_bf16_f32 v{240+d}, v{T+2*d}, v{T+2*d+1}")
        for d in range(4): A(f"v_accvgpr_write_b32 a{AF+4*j+d}, v{240+d}")
    assert not USE_CS
    DPOS = int(os.environ.get('DPOS', '12'))
    SEQ = list(range(DPOS)) + list(range(28, 36)) + list(range(DPOS, 28))
    POS.update({st: i for i, st in enumerate(SEQ)})
    for i in range(DEPTH): loads(SEQ[i])
    stamp(A, 1)
    Y = 240
    def y_write():
        A("s_nop 7\ns_nop 7")
        for g in range(4):
            A(f"ds_write_b128 v14, {ar(64+4*g,4)} offset:{g*1024}")
        A("ds_write_b32 v15, a80")
        A("v_add_u32 v14, 65536, v2\nv_lshlrev_b32 v15, 2, v3\nv_add_u32 v15, 81920, v15")
    def y_read():
        A("s_waitcnt lgkmcnt(0)\ns_barrier")
        for src in range(4):
            for g in range(4):
                A(f"ds_read_b128 {vr(DD+16*src+4*g,4)}, v14 offset:{src*4096+g*1024}")
        A(f"ds_read_b32 v36, v15\nds_read_b32 v37, v15 offset:256")
    def y_sum():
        vm.wait("x")
        A("""s_cmp_eq_u32 s10, s11
        s_cselect_b32 s12, 0xbf800000, 0x3f800000
        s_cmp_eq_u32 s6, 0
        s_cselect_b32 s13, 0x3f800000, 0
        v_mul_f32 v13, s13, v13
        s_waitcnt lgkmcnt(0)""")
        P = DD
        for r in range(0,16,2):
            A(f"v_pk_add_f32 {vr(P+r,2)}, {vr(P+r,2)}, {vr(P+16+r,2)}\nv_pk_add_f32 {vr(P+32+r,2)}, {vr(P+32+r,2)}, {vr(P+48+r,2)}")
        for r in range(16):
            op = "v_add_f32" if (r & 1) == 0 else "v_sub_f32"
            A(f"{op} v{P+r}, v{P+r}, v13")
        for r in range(16):
            A(f"v_fma_f32 v{P+r}, s12, v{P+32+r}, v{P+r}")
        A(f"""v_add_f32 v36, v36, v37
        v_add_f32 v36, v36, v13
        v_cmp_ne_u32 vcc, 0, v12
        s_nop 1
        v_cndmask_b32 v{P}, v{P}, v36, vcc""")
        for r in range(16): A(f"v_mul_f32 v{Y+r}, v{P+r}, v8\nv_lshlrev_b32 v{XV+r}, 16, v{XV+r}")
        for k in range(1, 4):
            A(f"s_add_u32 s12, s3, {k}\ns_and_b32 s12, s12, 3\ns_lshl_b32 s12, s12, 14\nv_add_u32 v{167+k}, s12, v38")
        A("s_mov_b32 s12, 0xbfb8aa3b\ns_mov_b32 s13, 0xbfb8aa3b\ns_mov_b32 s14, 1.0\ns_mov_b32 s15, 1.0")
    for i in range(NSTEP):
        st = SEQ[i]
        if i == 1: stamp(A, 2)
        if i == DPOS: stamp(A, 3)
        if i == DPOS + 8: stamp(A, 4)
        vm.wait(f"s{st}")
        mfmas(st)
        if i + DEPTH < NSTEP: loads(SEQ[i+DEPTH])
        if i == 2:
            late_setup()
            gen_setup()
        if GEN0 <= i < GEN0 + 16: gen_frag(i - GEN0)
        if i == DPOS + 8: y_write()
        if i == DPOS + 10: y_read()
        if i == DPOS + 12: y_sum()
    assert GEN0 + 1 < DPOS and GEN0 + 15 < DPOS + 7 and DPOS + 12 < NSTEP
    stamp(A, 5)
    A("s_nop 7\ns_nop 7")
    for w in range(4):
        if w < 3: A(f"s_cmp_eq_u32 s3, {w}\ns_cbranch_scc0 K2_TW{w+1}")
        for qd in range(4):
            if qd == w: continue
            for g in range(4):
                A(f"ds_write_b128 v11, {ar(16*qd+4*g,4)} offset:{(qd*4+g)*1024}")
        for r in range(16): A(f"v_accvgpr_read_b32 v{DD+r}, a{16*w+r}")
        if w < 3: A(f"s_branch K2_TWE\nK2_TW{w+1}:")
    A("K2_TWE:\ns_waitcnt lgkmcnt(0)\ns_barrier")
    for g in range(4):
        for k in range(1, 4):
            A(f"ds_read_b128 {vr(DD+16*k+4*g,4)}, v{167+k} offset:{g*1024}")
    D = DD; T = RING0
    for g in range(4):
        A(f"s_waitcnt lgkmcnt({9-3*g})")
        rs = range(4*g, 4*g+4); rp = (4*g, 4*g+2)
        for r in rp:
            A(f"v_pk_add_f32 {vr(D+r,2)}, {vr(D+r,2)}, {vr(D+16+r,2)}\nv_pk_add_f32 {vr(D+32+r,2)}, {vr(D+32+r,2)}, {vr(D+48+r,2)}")
        for r in rp: A(f"v_pk_add_f32 {vr(D+r,2)}, {vr(D+r,2)}, {vr(D+32+r,2)}")
        for r in rp: A(f"v_pk_mul_f32 {vr(T+r,2)}, {vr(D+r,2)}, s[12:13]")
        for r in rs: A(f"v_exp_f32 v{T+r}, v{T+r}")
        for r in rp: A(f"v_pk_mul_f32 {vr(D+r,2)}, {vr(D+r,2)}, {vr(Y+r,2)}")
        for r in rp: A(f"v_pk_add_f32 {vr(T+r,2)}, {vr(T+r,2)}, s[14:15]")
        for r in rs: A(f"v_rcp_f32 v{T+r}, v{T+r}")
        if g == 3: stamp(A, 6)
        A("s_nop 0")
        for r in rp: A(f"v_pk_fma_f32 {vr(D+r,2)}, {vr(D+r,2)}, {vr(T+r,2)}, {vr(XV+r,2)}")
        for r in rp: A(f"v_cvt_pk_bf16_f32 v{D+r}, v{D+r}, v{D+r+1}")
        for r in rp:
            A(f"buffer_store_short v{D+r}, v{10 if r == 0 else 9}, s[28:31], s{40+r} offen")
            A(f"buffer_store_short_d16_hi v{D+r}, v9, s[28:31], s{41+r} offen")
    if INSTR:
        A("s_waitcnt vmcnt(0)")
        if INSTR in (1,3): stamp(A, 7)
        stamp_dump(A, (0, 77, 130, 255), 8, waves=(0,3)) if INSTR != 3 else stamp_dump(A, (0,1,31,77,130,200,254,255), 8, waves=(0,))
    A("K2_END:\ns_endpgm")
    assert RING0 + 16*DEPTH <= DD
    return A.text(), 256
```

```python
from common import *
import os

DEPTH = int(os.environ.get('DEPTH', '8'))
DD = 176
NSTEP = 36
RING0 = 40
XV = 20
USE_CS = int(os.environ.get('USE_CS', '0'))
GEN0 = int(os.environ.get('GEN0', '3'))
AF = 96
def gen_k2(name):
    A = Asm()
    A(f".p2align 8\n.globl {name}\n.type {name},@function\n{name}:")
    A("s_cmp_ge_u32 s2, 256\ns_cbranch_scc1 K2_END")
    for i in range(8): stamp(A, i)
    A("s_load_dwordx2 s[16:17], s[0:1], 0\ns_load_dwordx2 s[18:19], s[0:1], 72\ns_load_dwordx2 s[20:21], s[0:1], 88")
    A("v_and_b32 v1, 63, v0\nv_lshrrev_b32 v2, 6, v0\ns_nop 0\nv_readfirstlane_b32 s3, v2")
    A("""s_and_b32 s4, s2, 7
    s_lshr_b32 s5, s2, 3
    s_and_b32 s6, s4, 1            ; p
    s_lshr_b32 s7, s4, 1
    s_lshl_b32 s7, s7, 2
    s_and_b32 s8, s5, 3
    s_add_u32 s7, s7, s8           ; ib
    s_lshr_b32 s8, s5, 2           ; j
    s_lshl_b32 s9, s6, 4
    s_add_u32 s9, s9, s7           ; tb
    s_lshr_b32 s10, s3, 1
    s_and_b32 s11, s3, 1           ; nt = w&1
    s_waitcnt lgkmcnt(0)""")
    srd(A, 32, 20, WS_SIZE)
    A(f"""s_mul_i32 s36, s9, {2*112*1024}
    s_mul_i32 s12, s3, {28*1024}
    s_add_u32 s36, s36, s12
    s_add_u32 s36, s36, {HF}
    s_add_u32 s37, s36, {112*1024}
    s_mul_i32 s38, s8, {2*112*1024}
    s_add_u32 s38, s38, s12
    s_add_u32 s38, s38, {WDT}
    s_add_u32 s39, s38, {112*1024}""")
    A("v_lshlrev_b32 v2, 4, v1          ; lane*16")
    def LATE():
        A("""v_and_b32 v3, 31, v1
    v_lshrrev_b32 v4, 5, v1
    s_lshl_b32 s12, s8, 5
    v_add_u32 v5, s12, v3              ; e = 32j+n
    v_mov_b32 v6, 256
    v_cmp_eq_u32 vcc, 0, v5
    s_nop 1
    v_cndmask_b32 v6, v5, v6, vcc
    v_sub_u32 v7, 512, v5
    v_and_b32 v7, 511, v7
    s_cmp_eq_u32 s11, 0
    s_cselect_b64 s[58:59], -1, 0
    s_nop 0
    v_cndmask_b32 v6, v7, v6, s[58:59]  ; col
    v_lshlrev_b32 v6, 1, v6
    v_mov_b32 v8, 1.0
    v_mov_b32 v9, 0
    s_andn2_b64 s[60:61], vcc, s[58:59]
    s_nop 1
    v_cndmask_b32 v8, v8, v9, s[60:61]
    s_lshl_b32 s12, s7, 6
    s_add_u32 s12, s12, s6
    v_lshlrev_b32 v9, 3, v4
    v_add_u32 v9, s12, v9
    v_sub_u32 v10, 1994, v9
    s_cmp_eq_u32 s10, 0
    s_cselect_b64 s[58:59], -1, 0
    s_nop 1
    v_cndmask_b32 v9, v10, v9, s[58:59]
    v_lshlrev_b32 v9, 10, v9
    v_add_u32 v9, v9, v6
    s_cmp_eq_u32 s9, 0
    s_cselect_b32 s12, s10, 0
    s_lshl_b32 s13, s12, 20
    v_mov_b32 v10, s13
    v_mov_b32 v11, 0
    v_cmp_eq_u32 vcc, 0, v4
    s_nop 1
    v_cndmask_b32 v10, v11, v10, vcc
    v_sub_u32 v10, v9, v10
    v_mov_b32 v12, s12
    v_cndmask_b32 v12, v11, v12, vcc
    """)
        for r in range(16):
            off = 16*(r>>2) + 2*(r&3)
            A(f"s_mov_b32 s12, {off*1024}\ns_mov_b32 s13, {(54-off)*1024}\ns_cmp_eq_u32 s10, 0\ns_cselect_b32 s{40+r}, s12, s13")

    vm = VM(A)
    POS = {}
    def slot(st): return RING0 + 16*(POS[st] % DEPTH)
    def loads(st):
        b = slot(st); tg = f"s{st}"
        if st < 28:
            o = (st & 3)*1024
            for q, s in enumerate((36, 38, 37, 39)):
                r = (0, 8, 4, 12)[q]
                vm.issue(tg, f"buffer_load_dwordx4 {vr(b+r,4)}, v2, s[32:35], s{s} offen offset:{o}")
            if (st & 3) == 3:
                for s in (36, 37, 38, 39): A(f"s_add_u32 s{s}, s{s}, 4096")
        else:
            u = st - 28
            o = (u & 1)*2048
            if USE_CS: vm.issue(tg, f"buffer_load_dwordx4 {vr(b,4)}, v2, s[32:35], s56 offen offset:{o}")
            vm.issue(tg, f"buffer_load_dwordx4 {vr(b+4,4)}, v2, s[32:35], s57 offen offset:{o}")
            if USE_CS: vm.issue(tg, f"buffer_load_dwordx4 {vr(b+8,4)}, v2, s[32:35], s56 offen offset:{o+1024}")
            vm.issue(tg, f"buffer_load_dwordx4 {vr(b+12,4)}, v2, s[32:35], s57 offen offset:{o+1024}")
            if u & 1: A("s_add_u32 s57, s57, 4096")
    def mfmas(st):
        b = slot(st)
        if st < 28:
            for mt in range(2):
                for nt in range(2):
                    a = 16*(2*mt+nt)
                    c = "0" if st == 0 else ar(a,16)
                    A(f"v_mfma_f32_32x32x16_bf16 {ar(a,16)}, {vr(b+4*mt,4)}, {vr(b+8+4*nt,4)}, {c}")
        else:
            f = st == 28
            u = st - 28
            A0 = vr(b,4) if USE_CS else ar(AF+8*u,4)
            A1 = vr(b+8,4) if USE_CS else ar(AF+8*u+4,4)
            A(f"v_mfma_f32_32x32x16_bf16 a[64:79], {A0}, {vr(b+4,4)}, {'0' if f else 'a[64:79]'}")
            A(f"v_mfma_f32_32x32x16_bf16 a[80:95], v[16:19], {vr(b+4,4)}, {'0' if f else 'a[80:95]'}")
            A(f"v_mfma_f32_32x32x16_bf16 a[64:79], {A1}, {vr(b+12,4)}, a[64:79]")
            A(f"v_mfma_f32_32x32x16_bf16 a[80:95], v[16:19], {vr(b+12,4)}, a[80:95]")
    def late_setup():
        LATE()
        A(f"""s_lshl_b32 s12, s8, 7
        s_add_u32 s12, s12, {A512}
        v_lshlrev_b32 v11, 2, v3""")
        vm.issue("x", "buffer_load_dword v13, v11, s[32:35], s12 offen")
        for r in range(16):
            vm.issue("x", f"buffer_load_ushort v{XV+r}, v{10 if r == 0 else 9}, s[24:27], s{40+r} offen")
        A("""v_mov_b32 v14, 0xBF803F80
        v_mov_b32 v15, 0
        v_cmp_eq_u32 vcc, 0, v3
        s_nop 1
        v_cndmask_b32 v16, v15, v14, vcc
        v_cndmask_b32 v17, v15, v14, vcc
        v_cndmask_b32 v18, v15, v14, vcc
        v_cndmask_b32 v19, v15, v14, vcc""")
        A("s_lshl_b32 s12, s3, 14\nv_add_u32 v11, s12, v2          ; w*16K + lane*16")
        A("s_lshl_b32 s12, s3, 12\ns_add_u32 s13, s12, 65536\nv_add_u32 v14, s13, v2\nv_add_u32 v38, s12, v2")
        A("s_lshl_b32 s12, s3, 8\ns_add_u32 s12, s12, 81920\nv_lshlrev_b32 v15, 2, v1\nv_add_u32 v15, s12, v15")
    def gen_setup():
        A("""s_lshl_b32 s12, s7, 6
        s_add_u32 s12, s12, s6
        v_lshlrev_b32 v245, 1, v3
        v_add_u32 v245, s12, v245
        v_cvt_f32_u32 v245, v245
        v_mul_f32 v245, 0xba000000, v245
        s_lshl_b32 s12, s11, 8
        v_lshlrev_b32 v244, 2, v4
        v_add_u32 v244, s12, v244
        v_cvt_f32_u32 v244, v244
        s_cmp_eq_u32 s10, 0
        s_cselect_b32 s12, 0x3e800000, 0
        v_mov_b32 v246, s12
        v_fma_f32 v244, v245, v244, v246
        s_andn2_b32 s12, s10, s11
        s_cmp_eq_u32 s12, 1
        s_cselect_b32 s12, 0x44000000, 0
        v_mov_b32 v246, s12
        v_mov_b32 v247, 0
        v_cmp_eq_u32 vcc, 0, v4
        s_nop 1
        v_cndmask_b32 v246, v247, v246, vcc
        v_fma_f32 v246, v245, v246, v244""")
    def gen_frag(j):
        import struct
        T = 168
        for e in range(8):
            K = 16*j + 8*(e >> 2) + (e & 3)
            if K == 0:
                A(f"v_mov_b32 v{T}, v246")
            else:
                A(f"v_fmamk_f32 v{T+e}, v245, 0x{struct.unpack('<I', struct.pack('<f', float(K)))[0]:08x}, v244")
        for e in range(8): A(f"v_sin_f32 v{T+e}, v{T+e}")
        for d in range(4): A(f"v_cvt_pk_bf16_f32 v{240+d}, v{T+2*d}, v{T+2*d+1}")
        for d in range(4): A(f"v_accvgpr_write_b32 a{AF+4*j+d}, v{240+d}")
    assert not USE_CS
    DPOS = int(os.environ.get('DPOS', '12'))
    SEQ = list(range(DPOS)) + list(range(28, 36)) + list(range(DPOS, 28))
    POS.update({st: i for i, st in enumerate(SEQ)})
    assert DPOS >= DEPTH
    for i in range(DEPTH): loads(SEQ[i])
    srd(A, 24, 16, 0x200000)
    srd(A, 28, 18, 0x200000)
    A(f"""s_lshl_b32 s12, s11, 14
    s_lshl_b32 s57, s10, 1
    s_add_u32 s57, s57, s6
    s_lshl_b32 s57, s57, 3
    s_add_u32 s57, s57, s8
    s_lshl_b32 s57, s57, 15
    s_add_u32 s57, s57, s12
    s_add_u32 s57, s57, {AB}""")
    PRE = int(os.environ.get('PRE', '-1'))
    if PRE >= 0:
        late_setup()
        gen_setup()
        for j in range(PRE): gen_frag(j)
    stamp(A, 1)
    Y = 240
    def y_write():
        A("s_nop 7\ns_nop 7")
        for g in range(4):
            A(f"ds_write_b128 v14, {ar(64+4*g,4)} offset:{g*1024}")
        A("ds_write_b32 v15, a80")
        A("v_add_u32 v14, 65536, v2\nv_lshlrev_b32 v15, 2, v3\nv_add_u32 v15, 81920, v15")
    def y_read():
        A("s_waitcnt lgkmcnt(0)\ns_barrier")
        for src in range(4):
            for g in range(4):
                A(f"ds_read_b128 {vr(DD+16*src+4*g,4)}, v14 offset:{src*4096+g*1024}")
        A(f"ds_read_b32 v36, v15\nds_read_b32 v37, v15 offset:256")
    def y_sum():
        vm.wait("x")
        A("""s_cmp_eq_u32 s10, s11
        s_cselect_b32 s12, 0xbf800000, 0x3f800000
        s_cmp_eq_u32 s6, 0
        s_cselect_b32 s13, 0x3f800000, 0
        v_mul_f32 v13, s13, v13
        s_waitcnt lgkmcnt(0)""")
        P = DD
        for r in range(0,16,2):
            A(f"v_pk_add_f32 {vr(P+r,2)}, {vr(P+r,2)}, {vr(P+16+r,2)}\nv_pk_add_f32 {vr(P+32+r,2)}, {vr(P+32+r,2)}, {vr(P+48+r,2)}")
        for r in range(16):
            op = "v_add_f32" if (r & 1) == 0 else "v_sub_f32"
            A(f"{op} v{P+r}, v{P+r}, v13")
        for r in range(16):
            A(f"v_fma_f32 v{P+r}, s12, v{P+32+r}, v{P+r}")
        A(f"""v_add_f32 v36, v36, v37
        v_add_f32 v36, v36, v13
        v_cmp_ne_u32 vcc, 0, v12
        s_nop 1
        v_cndmask_b32 v{P}, v{P}, v36, vcc""")
        for r in range(16): A(f"v_mul_f32 v{Y+r}, v{P+r}, v8\nv_lshlrev_b32 v{XV+r}, 16, v{XV+r}")
        for k in range(1, 4):
            A(f"s_add_u32 s12, s3, {k}\ns_and_b32 s12, s12, 3\ns_lshl_b32 s12, s12, 14\nv_add_u32 v{167+k}, s12, v38")
        A("s_mov_b32 s12, 0xbfb8aa3b\ns_mov_b32 s13, 0xbfb8aa3b\ns_mov_b32 s14, 1.0\ns_mov_b32 s15, 1.0")
    for i in range(NSTEP):
        st = SEQ[i]
        if i == 1: stamp(A, 2)
        if i == DPOS: stamp(A, 3)
        if i == DPOS + 8: stamp(A, 4)
        vm.wait(f"s{st}")
        mfmas(st)
        if i + DEPTH < NSTEP: loads(SEQ[i+DEPTH])
        if PRE < 0:
            if i == 2:
                late_setup()
                gen_setup()
            if GEN0 <= i < GEN0 + 16: gen_frag(i - GEN0)
        elif i + PRE < 16: gen_frag(i + PRE)
        if i == DPOS + 8: y_write()
        if i == DPOS + 10: y_read()
        if i == DPOS + 12: y_sum()
    if PRE < 0: assert GEN0 + 1 < DPOS and GEN0 + 15 < DPOS + 7
    else: assert all(2*u + 1 - PRE < DPOS + u for u in range(8))
    assert DPOS + 12 < NSTEP
    stamp(A, 5)
    A("s_nop 7\ns_nop 7")
    for w in range(4):
        if w < 3: A(f"s_cmp_eq_u32 s3, {w}\ns_cbranch_scc0 K2_TW{w+1}")
        for qd in range(4):
            if qd == w: continue
            for g in range(4):
                A(f"ds_write_b128 v11, {ar(16*qd+4*g,4)} offset:{(qd*4+g)*1024}")
        for r in range(16): A(f"v_accvgpr_read_b32 v{DD+r}, a{16*w+r}")
        if w < 3: A(f"s_branch K2_TWE\nK2_TW{w+1}:")
    A("K2_TWE:\ns_waitcnt lgkmcnt(0)\ns_barrier")
    for g in range(4):
        for k in range(1, 4):
            A(f"ds_read_b128 {vr(DD+16*k+4*g,4)}, v{167+k} offset:{g*1024}")
    D = DD; T = RING0
    for g in range(4):
        A(f"s_waitcnt lgkmcnt({9-3*g})")
        rs = range(4*g, 4*g+4); rp = (4*g, 4*g+2)
        for r in rp:
            A(f"v_pk_add_f32 {vr(D+r,2)}, {vr(D+r,2)}, {vr(D+16+r,2)}\nv_pk_add_f32 {vr(D+32+r,2)}, {vr(D+32+r,2)}, {vr(D+48+r,2)}")
        for r in rp: A(f"v_pk_add_f32 {vr(D+r,2)}, {vr(D+r,2)}, {vr(D+32+r,2)}")
        for r in rp: A(f"v_pk_mul_f32 {vr(T+r,2)}, {vr(D+r,2)}, s[12:13]")
        for r in rs: A(f"v_exp_f32 v{T+r}, v{T+r}")
        for r in rp: A(f"v_pk_mul_f32 {vr(D+r,2)}, {vr(D+r,2)}, {vr(Y+r,2)}")
        for r in rp: A(f"v_pk_add_f32 {vr(T+r,2)}, {vr(T+r,2)}, s[14:15]")
        for r in rs: A(f"v_rcp_f32 v{T+r}, v{T+r}")
        if g == 3: stamp(A, 6)
        A("s_nop 0")
        for r in rp: A(f"v_pk_fma_f32 {vr(D+r,2)}, {vr(D+r,2)}, {vr(T+r,2)}, {vr(XV+r,2)}")
        for r in rp: A(f"v_cvt_pk_bf16_f32 v{D+r}, v{D+r}, v{D+r+1}")
        for r in rp:
            A(f"buffer_store_short v{D+r}, v{10 if r == 0 else 9}, s[28:31], s{40+r} offen")
            A(f"buffer_store_short_d16_hi v{D+r}, v9, s[28:31], s{41+r} offen")
    if INSTR:
        A("s_waitcnt vmcnt(0)")
        if INSTR in (1,3): stamp(A, 7)
        stamp_dump(A, (0, 77, 130, 255), 8, waves=(0,3)) if INSTR != 3 else stamp_dump(A, (0,1,31,77,130,200,254,255), 8, waves=(0,))
    A("K2_END:\ns_endpgm")
    assert RING0 + 16*DEPTH <= DD
    return A.text(), 256
```
